```python
import torch

def _softmax(x, axis=-1):
    return torch.softmax(x, dim=axis)
def _gelu(x):
    return torch.nn.functional.gelu(x, approximate="tanh")
def _silu(x):
    return torch.nn.functional.silu(x)
def _sigmoid(x):
    return torch.sigmoid(x)
def _layernorm(x, axis=-1, eps=1e-5):
    m = x.mean(dim=axis, keepdim=True)
    v = x.var(dim=axis, keepdim=True, unbiased=False)
    return (x - m) / torch.sqrt(v + eps)
def _scatter_add(tgt, idx, src, axis=0):
    return tgt.clone().index_add_(axis, idx, src)
def _segment_sum(src, seg, n):
    out = torch.zeros((n,) + src.shape[1:], dtype=src.dtype)
    return out.index_add_(0, seg, src)
def _pad(x, pw):
    flat = tuple(v for pair in reversed(pw) for v in pair)
    return torch.nn.functional.pad(x, flat)

kernel_name = 'recurrent_scan__sliding_block_cached__geglu_ffn__decode'

def setup_inputs():

    _w = (lambda a: (lambda t: t.to(torch.bfloat16) if t.is_floating_point() else t)(torch.as_tensor(a)))
    def _A_setup():
        B, Sq, D = 2, 1, 448
        Hq, Hkv, Sk, Dh = 16, 8, 32768, 256
        assert Hq % Hkv == 0, (Hq, Hkv)
        return {
            "x": _w((lambda *s: torch.randn(*s, dtype=torch.bfloat16) * 0.05)(B, Sq, D)),
            "k_cache": _w((lambda *s: torch.randn(*s, dtype=torch.bfloat16) * 1.6)(B, Hkv, Sk, Dh)),
            "v_cache": _w((lambda *s: torch.randn(*s, dtype=torch.bfloat16) * 0.2)(B, Hkv, Sk, Dh)),
            "wq": _w((lambda *s: torch.randn(*s, dtype=torch.bfloat16) * 1.6)(D, Hq * Dh) * (D ** -0.5)),
            "wo": _w((lambda *s: torch.randn(*s, dtype=torch.bfloat16) * 0.2)(Hq * Dh, D) * ((Hq * Dh) ** -0.5)),
        }
    _A_in = _A_setup()

    def _B_setup():
        B, S, D, F = 2, 1, 448, 1792
        return {
            "x": _w((lambda *s: torch.randn(*s, dtype=torch.bfloat16) * 0.05)(B, S, D)),
            "w_gate": _w((lambda *s: torch.randn(*s, dtype=torch.bfloat16) * 0.1)(D, F)),
            "w_up": _w((lambda *s: torch.randn(*s, dtype=torch.bfloat16) * 0.1)(D, F)),
            "w_down": _w((lambda *s: torch.randn(*s, dtype=torch.bfloat16) * 0.1)(F, D)),
        }
    _B_in = _B_setup()

    return {
        "A_x": _A_in["x"],
        "A_k_cache": _A_in["k_cache"],
        "A_v_cache": _A_in["v_cache"],
        "A_wq": _A_in["wq"],
        "A_wo": _A_in["wo"],
        "B_x": _B_in["x"],
        "B_w_gate": _B_in["w_gate"],
        "B_w_up": _B_in["w_up"],
        "B_w_down": _B_in["w_down"],
    }

def reference(A_x, A_k_cache, A_v_cache, A_wq, A_wo, B_x, B_w_gate, B_w_up, B_w_down):
    def _A_ref(x, k_cache, v_cache, wq, wo):
        B, Sq, D = x.shape
        Hq, Dh = 16, 256
        Hkv, Sk = k_cache.shape[1], k_cache.shape[2]
        W = min(4096, max(256, Sk // 4))
        rep = Hq // Hkv
        q = (lambda x, *d: x.permute(*d))((x @ wq).reshape(B, Sq, Hq, Dh), 0, 2, 1, 3)
        k = (lambda x, n, axis: torch.repeat_interleave(x, n, dim=axis))(k_cache[:, :, Sk - W:, :], rep, axis=1)
        v = (lambda x, n, axis: torch.repeat_interleave(x, n, dim=axis))(v_cache[:, :, Sk - W:, :], rep, axis=1)
        scores = torch.einsum("bhqd,bhkd->bhqk", q, k) * (Dh ** -0.5)
        p = _softmax(scores, axis=-1)
        o = torch.einsum("bhqk,bhkd->bhqd", p, v)
        return (lambda x, *d: x.permute(*d))(o, 0, 2, 1, 3).reshape(B, Sq, Hq * Dh) @ wo

    def _B_ref(x, w_gate, w_up, w_down):
        return (_gelu(x @ w_gate) * (x @ w_up)) @ w_down

    x = A_x
    xn = _layernorm(x, axis=-1)
    s = _A_ref(xn, A_k_cache, A_v_cache, A_wq, A_wo)
    g = _silu(_B_ref(xn, B_w_gate, B_w_up, B_w_down))
    return x + s * g
```

```python
import re

TRANS = ("v_exp_f32", "v_log_f32", "v_rcp_f32", "v_rsq_f32", "v_sqrt_f32", "v_sin_f32", "v_cos_f32")

def _expand(op):
    op = op.strip()
    neg = op.lstrip("-")
    m = re.fullmatch(r"abs\((.*)\)", neg)
    if m: neg = m.group(1)
    m = re.fullmatch(r"([vsa])\[(\d+):(\d+)\]", neg)
    if m: return [f"{m.group(1)}{i}" for i in range(int(m.group(2)), int(m.group(3)) + 1)]
    m = re.fullmatch(r"([vsa])(\d+)", neg)
    if m: return [neg]
    if neg in ("vcc", "exec"): return [neg + "_lo", neg + "_hi"]
    if neg in ("vcc_lo", "vcc_hi", "exec_lo", "exec_hi", "m0", "scc"): return [neg]
    return []

def parse(line):
    t = line.split(";")[0].strip()
    if not t or t.endswith(":") or t.startswith("."): return None
    parts = t.split(None, 1)
    mn = parts[0]
    rest = parts[1] if len(parts) > 1 else ""
    ops = []; depth = 0; cur = ""
    for ch in rest:
        if ch == "[": depth += 1
        if ch == "]": depth -= 1
        if ch == "," and depth == 0: ops.append(cur); cur = ""
        else: cur += ch
    if cur.strip(): ops.append(cur)
    mods = ""
    if ops:
        last = ops[-1].strip().split(None, 1)
        ops[-1] = last[0] if last else ""
        mods = last[1] if len(last) > 1 else ""
    ops = [o.strip() for o in ops]
    base = re.sub(r"_(e32|e64|dpp|sdwa)$", "", mn)
    d, s = [], []
    R = [_expand(o) for o in ops]
    flat = lambda xs: [r for x in xs for r in x]
    if base.startswith("v_mfma"):
        d = R[0]; s = flat(R[1:])
    elif base.startswith("v_permlane") and "swap" in base:
        d = flat(R[:2]); s = flat(R[:2])
    elif base.startswith("v_cmp"):
        d = R[0]; s = flat(R[1:])
    elif base in ("v_add_co_u32", "v_sub_co_u32", "v_addc_co_u32", "v_subb_co_u32"):
        d = R[0] + R[1]; s = flat(R[2:])
    elif base in ("v_fmac_f32", "v_dot2c_f32_bf16", "v_mac_f32"):
        d = R[0]; s = flat(R)
    elif base.startswith("v_"):
        d = R[0]; s = flat(R[1:])
        if mn.endswith("_dpp"): s = s + R[0]
    elif base.startswith("ds_read") or base.startswith("ds_bpermute") or base.startswith("ds_swizzle") or "_rtn_" in base:
        d = R[0]; s = flat(R[1:])
    elif base.startswith("ds_"):
        s = flat(R)
    elif base.startswith("buffer_load") or base.startswith("global_load"):
        if " lds" in " " + mods: s = flat(R)
        else: d = R[0]; s = flat(R[1:])
    elif base.startswith("buffer_store") or base.startswith("global_store") or base.startswith("buffer_atomic"):
        s = flat(R)
        if base.startswith("buffer_atomic") and "sc0" in mods: d = R[0]
    elif base.startswith("s_cmp") or base.startswith("s_cbranch") or base in ("s_branch", "s_waitcnt", "s_nop", "s_barrier", "s_endpgm", "s_sleep", "s_setprio"):
        s = flat(R)
    elif base.startswith("s_"):
        d = R[0] if R else []; s = flat(R[1:])
        if "saveexec" in base: d = d + ["exec_lo", "exec_hi"]; s = s + ["exec_lo", "exec_hi"]
    return mn, base, d, s, mods

def is_valu(base): return base.startswith("v_") and not base.startswith("v_mfma")
def is_mfma(base): return base.startswith("v_mfma")
def is_vmem(base): return base.startswith("buffer_") or base.startswith("global_") or base.startswith("flat_")
def is_ds(base): return base.startswith("ds_")

def hazard_pass(lines):
    out = []
    hist = []
    nins = 0
    def need(cond_list):
        n = 0
        for h in hist:
            for kind, regs, ws in cond_list:
                if h["kind"] == kind and (h["regs"] & regs):
                    n = max(n, ws - h["dist"])
        return n
    for line in lines:
        p = parse(line)
        if p is None:
            out.append(line); continue
        mn, base, d, s, mods = p
        D, S = set(d), set(s)
        vS = {r for r in S if r[0] in "va" and r[1:].isdigit()}
        vD = {r for r in D if r[0] in "va" and r[1:].isdigit()}
        sS = {r for r in S if (r[0] == "s" and r[1:].isdigit()) or r.startswith("vcc") or r.startswith("exec") or r == "m0"}
        conds = []
        if is_valu(base):
            if mn.endswith("_dpp"): conds.append(("valu_v", vS, 2))
            if base.startswith("v_permlane"): conds.append(("valu_v", vS, 2))
            if base in ("v_readlane_b32", "v_readfirstlane_b32"): conds.append(("valu_v", vS, 1))
            if base not in TRANS: conds.append(("trans_v", vS, 1))
            conds.append(("valu_s", {r for r in sS if not r.startswith("exec")}, 2))
            if base in ("v_readlane_b32", "v_writelane_b32"): conds.append(("valu_s", sS, 4))
            conds.append(("mfma_d", vS | vD, 8))
            conds.append(("mfma_c", vD, 3))
            conds.append(("dot_v", vS | vD, 3)) if not base.startswith("v_dot2") else None
            if base.startswith("v_dot2"):
                acc = set(d)
                conds.append(("dot_v", vS - acc, 3))
                conds.append(("dot_op_" + ("x" if base == "v_dot2c_f32_bf16" else "y"), acc, 3))
            conds.append(("store_data", vD, 2))
        if is_mfma(base):
            conds.append(("valu_v", vS, 2))
            conds.append(("dot_v", vS, 3))
            cregs = set(_expand(line.split(";")[0].split(None, 1)[1].split(",")[-1].strip().split()[0])) if True else set()
            ab = vS - cregs
            conds.append(("mfma_d", ab, 8))
            for h in hist:
                if h["kind"] == "mfma_d" and (h["regs"] & cregs) and h["regs"] != cregs:
                    conds.append(("mfma_d", cregs, 6))
        if is_vmem(base) or is_ds(base):
            conds.append(("valu_s", sS, 5))
            conds.append(("mfma_d", vS | vD, 8))
            conds.append(("dot_v", vS, 3))
            if vD: conds.append(("store_data", vD, 1))
        if base.startswith("s_") and not base.startswith("s_nop"):
            conds.append(("valu_s", sS, 1))
        n = need(conds)
        if n > 0:
            k = n
            while k > 0:
                c = min(k, 16)
                out.append(f"s_nop {c-1}")
                k -= c
            for h in hist: h["dist"] += n
        out.append(line)
        step = 1
        if base == "s_nop": step = int(line.split(";")[0].split()[1]) + 1
        for h in hist: h["dist"] += step
        hist = [h for h in hist if h["dist"] < 20]
        if is_valu(base):
            if vD:
                hist.append(dict(kind="valu_v", regs=vD, dist=0))
                if base in TRANS: hist.append(dict(kind="trans_v", regs=vD, dist=0))
                if base.startswith("v_dot2"):
                    hist.append(dict(kind="dot_v", regs=vD, dist=0))
                    hist.append(dict(kind="dot_op_" + ("y" if base == "v_dot2c_f32_bf16" else "x"), regs=vD, dist=0))
            sD = {r for r in D if (r[0] == "s" and r[1:].isdigit()) or r.startswith("vcc")}
            if sD: hist.append(dict(kind="valu_s", regs=sD, dist=0))
        if is_mfma(base):
            hist.append(dict(kind="mfma_d", regs=vD, dist=0))
            cregs = set(_expand(line.split(";")[0].split(None, 1)[1].split(",")[-1].strip().split()[0]))
            if cregs: hist.append(dict(kind="mfma_c", regs=cregs, dist=0))
        if (base.startswith("buffer_store") or base.startswith("global_store")) and ("x4" in base or "x3" in base):
            hist.append(dict(kind="store_data", regs=set(_expand(line.split(None, 1)[1].split(",")[0] if not line.split(None,1)[1].strip().startswith("v[") else re.match(r"\s*(v\[\d+:\d+\])", line.split(None, 1)[1]).group(1))), dist=0))
    return out

class Asm:
    def __init__(self):
        self.L = []
    def __call__(self, s):
        for x in s.split("\n"):
            x = x.strip()
            if x: self.L.append(x)
    def label(self, n): self.L.append(n + ":")
    def c(self, text): self.L.append("; " + text)
    def text(self): return "\n".join(hazard_pass(self.L)) + "\n"
```

```python
import sys
sys.path.insert(0, "gen")
from asmlib import Asm

KNAME = "recurrent_scan__sliding_block_cached__geglu_ffn__decode_kernel"

XID = 0x200
QP = 0x1000
FP = 0x21000
P1 = 0x40000
P2 = 0x150000
YP = 0x240000
STAMP = 0x400000
R1 = 4224
R2 = 32896
WS_BYTES = 0x40000000

L_FLAG = 0
L_YCNT = 4
L_PUBCNT = 8
L_P2CNT = 12
L_NEXT = 16
L_TOK = 64
L_Q = 128
L_XD = 1216
L_HD = 3008
L_ST = 3136
L_SR = 3904
L_YR = 5952
L_OL = 6976
OLS = 2064
LDS_BYTES = L_OL + 16 * OLS

DPP = "row_mask:0xf bank_mask:0xf"
SPIN_MAX = 200000

def gen(stamps=False, kvflag="nt", wflag="nt", D=8, REL=7, qdelay=55, retry_sleep=16, qsleep=2, p1delay=32, p1retry=16,
        codepf=True, rot=(1, 0, 0), ln1=True, dynq=True, Dlast=12, perm=False, order=(4, 5, 10, 11, 0, 1, 8, 9, 12, 13, 14, 15)):
    assert D <= 8
    a = Asm()
    sX, sK, sV, sWQ, sWO, sWG, sWU, sWD, sOUT, sDBG, sWSp = 4, 6, 8, 10, 12, 16, 18, 20, 22, 24, 26
    K, V, WS, TILE, WD, XS, OUT = "s[28:31]", "s[32:35]", "s[36:39]", "s[40:43]", "s[48:51]", "s[52:55]", "s[56:59]"
    T = ["s64", "s65", "s66", "s67"]
    mB3, mLO = "s[70:71]", "s[72:73]"
    KR, VR, WOR, QF = 36, 68, 100, 20

    def stamp(k):
        if stamps:
            k = {9: 6, 10: 7, 11: 9}.get(k, k)
            a(f"s_memrealtime s[{76+2*k}:{77+2*k}]")
    def srd(n, ptr, size):
        a(f"s_mov_b32 s{n}, s{ptr}"); a(f"s_mov_b32 s{n+1}, s{ptr+1}"); a(f"s_mov_b32 s{n+2}, {size:#x}"); a(f"s_mov_b32 s{n+3}, 0x20000")
    def ids():
        a("s_and_b32 s60, s2, 7"); a("s_lshr_b32 s61, s2, 3"); a("s_lshr_b32 s62, s61, 4"); a("s_and_b32 s63, s61, 15")
    def lane_consts():
        a("v_and_b32 v4, 8, v0"); a(f"v_cmp_ne_u32 {mB3}, 0, v4")
        a(f"v_cmp_gt_u32 {mLO}, 32, v0")
        a("v_and_b32 v4, 7, v0"); a("v_and_b32 v5, 1, v0"); a("v_cmp_eq_u32 vcc, 1, v5")
        a("v_mov_b32 v6, 0xffff"); a("v_mov_b32 v7, 0xffff0000"); a("v_cndmask_b32 v6, v6, v7, vcc")
        a("v_lshrrev_b32 v4, 1, v4")
        for r in range(4):
            a(f"v_cmp_eq_u32 vcc, {r}, v4"); a(f"v_cndmask_b32 v{8+r}, 0, v6, vcc")
        a("v_lshrrev_b32 v4, 4, v0"); a("v_lshlrev_b32 v4, 9, v4"); a("v_and_b32 v5, 15, v0"); a("v_lshlrev_b32 v5, 4, v5"); a("v_add_u32 v1, v4, v5")
        a("s_mov_b32 s74, s3")
        for coef, reg in zip(rot, ("s63", "s60", "s62")):
            if coef == 1: a(f"s_add_u32 s74, s74, {reg}")
            elif coef: a(f"s_mul_i32 s75, {reg}, {coef}"); a("s_add_u32 s74, s74, s75")
        a("s_and_b32 s74, s74, 15")
        a("s_lshl_b32 s75, s62, 3"); a("s_add_u32 s75, s75, s60"); a("s_lshl_b32 s75, s75, 24"); a("s_add_u32 s75, s75, 0xE00000")
        a("s_lshl_b32 s46, s63, 17"); a("s_add_u32 s75, s75, s46"); a("s_lshl_b32 s74, s74, 13"); a("s_add_u32 s44, s74, s75")
        a("s_add_u32 s45, s44, 4096")
    def late_srds():
        srd(28, sK, 0x10000000); srd(32, sV, 0x10000000); srd(56, sOUT, 1792)
    def make_tags():
        a("s_add_u32 s68, s68, 1"); a("s_addc_u32 s69, s69, 0")
        a("s_mul_i32 s96, s68, 0x7f4a7c15"); a("s_mul_hi_u32 s97, s68, 0x7f4a7c15")
        a("s_mul_i32 s75, s68, 0x9e3779b9"); a("s_add_u32 s97, s97, s75")
        a("s_mul_i32 s75, s69, 0x7f4a7c15"); a("s_add_u32 s97, s97, s75")
        a("s_and_b32 s64, s96, 0xfff"); a("s_bfe_u32 s65, s96, 0xc000c")
        a("s_lshr_b32 s66, s96, 24"); a("s_lshl_b32 s75, s97, 8"); a("s_or_b32 s66, s66, s75"); a("s_and_b32 s66, s66, 0xfff")
        a("s_bfe_u32 s67, s97, 0xc0004")
    def lds_wait_ge(addr, val, lab, sleep=0):
        a("v_mov_b32 v2, 0"); a("s_mov_b32 s97, 0")
        a.label(lab)
        a(f"ds_read_b32 v3, v2 offset:{addr}"); a("s_add_u32 s97, s97, 1"); a("s_waitcnt lgkmcnt(0)")
        a(f"v_cmp_le_u32 vcc, {val}, v3"); a(f"s_cbranch_vccnz {lab}_ok")
        if sleep: a(f"s_sleep {sleep}")
        a(f"s_cmp_gt_u32 s97, {SPIN_MAX*8}"); a(f"s_cbranch_scc0 {lab}")
        a.label(lab + "_ok")
    def lds_inc(addr):
        a("v_mov_b32 v2, 0"); a("v_mov_b32 v3, 1"); a("s_mov_b64 s[96:97], exec"); a("s_mov_b64 exec, 1")
        a(f"ds_add_u32 v2, v3 offset:{addr}")
        a("s_mov_b64 exec, s[96:97]")
    def or_tree(regs, dst):
        regs = list(regs)
        a(f"v_or3_b32 {dst}, v{regs[0]}, v{regs[1]}, v{regs[2]}"); regs = regs[3:]
        while len(regs) >= 2:
            a(f"v_or3_b32 {dst}, {dst}, v{regs[0]}, v{regs[1]}"); regs = regs[2:]
        if regs: a(f"v_or_b32 {dst}, {dst}, v{regs[0]}")
        a(f"v_and_b32 {dst}, 0xfff, {dst}"); a(f"v_cmp_ne_u32 vcc, 0, {dst}")
    def untag(base, n):
        for i in range(n):
            for k in range(4): a(f"v_xor_b32 v{base+4*i+k}, {T[k]}, v{base+4*i+k}")
    def pub_lane_addr(dst, t1, t2):
        a(f"v_lshrrev_b32 {t1}, 5, v0"); a(f"v_mul_u32_u24 {t1}, 14, {t1}"); a(f"v_bfe_u32 {t2}, v0, 2, 2"); a(f"v_add_u32 {t1}, {t1}, {t2}")
        a(f"v_mul_u32_u24 {dst}, {R2}, {t1}")
        a(f"v_and_b32 {t1}, 3, v0"); a(f"v_lshlrev_b32 {t1}, 5, {t1}"); a(f"v_bfe_u32 {t2}, v0, 4, 1"); a(f"v_lshlrev_b32 {t2}, 4, {t2}")
        a(f"v_add3_u32 {dst}, {dst}, {t1}, {t2}")
    def reduce4(base):
        for k in range(4): a(f"v_add_f32_dpp v{base+k}, v{base+k}, v{base+k} row_ror:8 {DPP}")
        a(f"v_permlane16_swap_b32 v{base}, v{base+1}"); a(f"v_permlane16_swap_b32 v{base+2}, v{base+3}")
        a(f"v_add_f32 v{base}, v{base}, v{base+1}"); a(f"v_add_f32 v{base+2}, v{base+2}, v{base+3}")
        a(f"v_permlane32_swap_b32 v{base}, v{base+2}"); a(f"v_add_f32 v{base}, v{base}, v{base+2}")
    def col_addr(dst, t1):
        a(f"v_and_b32 {dst}, 7, v0"); a(f"v_lshlrev_b32 {dst}, 4, {dst}"); a(f"v_lshrrev_b32 {t1}, 5, v0"); a(f"v_lshlrev_b32 {t1}, 3, {t1}"); a(f"v_add_u32 {dst}, {dst}, {t1}")
        a(f"v_bfe_u32 {t1}, v0, 4, 1"); a(f"v_lshlrev_b32 {t1}, 2, {t1}"); a(f"v_add_u32 {dst}, {dst}, {t1}")

    a("s_cmp_ge_u32 s2, 256"); a("s_cbranch_scc1 L_end")
    if perm:
        a("s_mul_i32 s2, s2, 37"); a("s_add_u32 s2, s2, 11"); a("s_and_b32 s2, s2, 255")
    a("s_load_dwordx16 s[4:19], s[0:1], 0")
    a("s_load_dwordx8 s[20:27], s[0:1], 64")
    stamp(0)
    a("v_lshrrev_b32 v1, 6, v0"); a("v_and_b32 v0, 63, v0")
    a("v_lshlrev_b32 v2, 1, v0"); a("v_mov_b32 v3, 0")
    a("v_readfirstlane_b32 s3, v1")
    a("v_and_b32 v2, 0x7c, v2")
    a("ds_write_b32 v2, v3")
    a("s_cmp_lt_u32 s3, 2"); a("s_cbranch_scc0 L_dpro")

    a("s_setprio 3")
    ids()
    a("s_cmp_eq_u32 s3, 0"); a("s_cbranch_scc0 L_ctrl1")
    a("s_lshr_b32 s74, s61, 3"); a("s_and_b32 s75, s61, 7")
    a(f"s_mul_i32 s96, s74, {112*8192}"); a("s_lshl_b32 s97, s60, 10"); a("s_add_u32 s96, s96, s97"); a("s_lshl_b32 s97, s75, 7"); a("s_add_u32 s96, s96, s97")
    a("s_lshl_b32 s98, s60, 3"); a("s_add_u32 s98, s98, s74"); a("s_lshl_b32 s98, s98, 11")
    a("s_lshl_b32 s99, s75, 8"); a("s_add_u32 s98, s98, s99"); a(f"s_add_u32 s98, s98, {QP}")
    a("s_mov_b32 s99, 8192"); a("s_mov_b32 s97, 8192"); a(f"s_mov_b32 s42, {448*8192:#x}")
    a("s_waitcnt lgkmcnt(0)")
    a("s_mov_b32 s40, s10"); a("s_mov_b32 s41, s11")
    a("s_branch L_tile")
    a.label("L_ctrl1")
    a("s_lshr_b32 s47, s2, 1"); a("s_and_b32 s75, s2, 1"); a("s_lshl_b32 s75, s75, 7"); a("s_add_u32 s47, s47, s75")
    a("s_cmp_lt_u32 s47, 224"); a("s_cbranch_scc0 L_notile")
    a("s_lshr_b32 s75, s47, 1"); a("s_mul_i32 s74, s75, 4682"); a("s_lshr_b32 s74, s74, 17")
    a("s_mul_i32 s96, s74, 28"); a("s_sub_u32 s75, s75, s96")
    a(f"s_mul_i32 s96, s74, {112*3584}"); a("s_lshl_b32 s97, s75, 7"); a("s_add_u32 s96, s96, s97")
    a("s_and_b32 s99, s47, 1")
    a("s_lshl_b32 s98, s99, 2"); a("s_add_u32 s98, s98, s74"); a("s_mul_i32 s98, s98, 14336")
    a("s_lshl_b32 s97, s75, 8"); a("s_add_u32 s98, s98, s97"); a(f"s_add_u32 s98, s98, {FP}")
    a(f"s_mov_b32 s42, {448*3584:#x}")
    a("s_cmp_eq_u32 s99, 0")
    a("s_waitcnt lgkmcnt(0)")
    a("s_cselect_b32 s40, s16, s18"); a("s_cselect_b32 s41, s17, s19")
    a("s_mov_b32 s97, 3584"); a("s_mov_b32 s99, 7168")
    a.label("L_tile")
    a("s_mov_b32 s43, 0x20000")
    srd(52, sX, 1792)
    TR = 40
    a("v_lshrrev_b32 v4, 3, v0"); a("v_mul_lo_u32 v4, s97, v4"); a("v_and_b32 v5, 7, v0"); a("v_lshlrev_b32 v5, 4, v5"); a("v_add_u32 v4, v4, v5")
    a("v_and_b32 v6, 31, v0"); a("v_lshrrev_b32 v7, 5, v0"); a("v_mul_u32_u24 v7, 896, v7"); a("v_lshlrev_b32 v5, 5, v6"); a("v_add_u32 v5, v5, v7")
    a("v_cmp_gt_u32 vcc, 28, v6"); a("v_mov_b32 v7, 0x10000"); a("v_cndmask_b32 v5, v7, v5, vcc")
    a(f"buffer_load_dwordx4 v[20:23], v5, {XS}, 0 offen"); a(f"buffer_load_dwordx4 v[24:27], v5, {XS}, 0 offen offset:16")
    a("s_mul_i32 s75, s74, 224"); a("v_lshlrev_b32 v6, 2, v0"); a("v_cmp_gt_u32 vcc, 56, v0"); a("v_cndmask_b32 v6, v7, v6, vcc")
    a(f"buffer_load_dword v28, v6, {XS}, s75 offen"); a(f"buffer_load_dword v29, v6, {XS}, s75 offen offset:896")
    a("s_lshl_b32 s97, s97, 3")
    for t in range(14):
        a(f"buffer_load_dwordx4 v[{TR+4*t}:{TR+4*t+3}], v4, {TILE}, s96 offen {wflag}")
        if t < 13: a("s_add_u32 s96, s96, s97")
    a("s_load_dwordx2 s[68:69], s[26:27], 0")
    a("s_barrier")
    stamp(9)
    srd(36, sWSp, WS_BYTES)
    late_srds()
    lane_consts()
    a("s_waitcnt lgkmcnt(0)")
    make_tags()
    a("s_mov_b32 s74, 0x3f803f80")
    a("s_waitcnt vmcnt(16)")
    a("v_dot2_f32_bf16 v30, v20, s74, 0"); a("v_dot2_f32_bf16 v31, v20, v20, 0")
    for j in range(1, 8):
        a(f"v_dot2c_f32_bf16 v30, s74, v{20+j}"); a(f"v_dot2c_f32_bf16 v31, v{20+j}, v{20+j}")
    for m in ("row_ror:8", "row_ror:4", "row_ror:2", "row_ror:1"):
        a(f"v_add_f32_dpp v30, v30, v30 {m} {DPP}"); a(f"v_add_f32_dpp v31, v31, v31 {m} {DPP}")
    a("v_mov_b32 v32, v30"); a("v_mov_b32 v33, v31")
    a("v_permlane16_swap_b32 v30, v32"); a("v_permlane16_swap_b32 v31, v33")
    a("v_add_f32 v30, v30, v32"); a("v_add_f32 v31, v31, v33")
    a("v_mul_f32 v30, 0x3b124925, v30")
    a("v_mul_f32 v31, 0x3b124925, v31")
    a("v_fma_f32 v31, -v30, v30, v31"); a("v_max_f32 v31, 0, v31")
    a("v_cvt_pk_bf16_f32 v31, v31, v30")
    a("v_and_b32 v30, 0xffff0000, v31")
    a("v_lshlrev_b32 v31, 16, v31")
    a("v_add_f32 v31, 0x3727c5ac, v31"); a("v_cvt_pk_bf16_f32 v31, v31, v31"); a("v_and_b32 v31, 0xffff0000, v31")
    a("v_sqrt_f32 v31, v31"); a("v_cvt_pk_bf16_f32 v31, v31, v31"); a("v_and_b32 v31, 0xffff0000, v31")
    a("v_rcp_f32 v31, v31")
    a("v_readlane_b32 s74, v30, 0"); a("v_readlane_b32 s75, v30, 32"); a("v_readlane_b32 s96, v31, 0"); a("v_readlane_b32 s97, v31, 32")
    a("s_waitcnt vmcnt(14)")
    for b in range(2):
        a(f"v_lshlrev_b32 v{96+2*b}, 16, v{28+b}"); a(f"v_and_b32 v{97+2*b}, 0xffff0000, v{28+b}")
    for b in range(2):
        a(f"v_subrev_f32 v{96+2*b}, s{74+b}, v{96+2*b}"); a(f"v_subrev_f32 v{97+2*b}, s{74+b}, v{97+2*b}")
    for b in range(2): a(f"v_cvt_pk_bf16_f32 v{100+b}, v{96+2*b}, v{97+2*b}")
    for b in range(2):
        a(f"v_lshlrev_b32 v{96+2*b}, 16, v{100+b}"); a(f"v_and_b32 v{97+2*b}, 0xffff0000, v{100+b}")
    for b in range(2):
        a(f"v_mul_f32 v{96+2*b}, s{96+b}, v{96+2*b}"); a(f"v_mul_f32 v{97+2*b}, s{96+b}, v{97+2*b}")
    for j in range(4): a(f"v_cvt_pk_bf16_f32 v{96+j}, v{96+j}, v{96+j}")
    a("s_mul_i32 s74, s3, 896"); a("v_lshlrev_b32 v6, 3, v0"); a("v_add_u32 v6, s74, v6")
    a("v_cmp_gt_u32 vcc, 56, v0"); a("s_and_saveexec_b64 s[96:97], vcc")
    a(f"ds_write_b64 v6, v[96:97] offset:{L_XD}"); a(f"ds_write_b64 v6, v[98:99] offset:{L_XD+448}")
    a("s_mov_b64 exec, s[96:97]")
    a("v_lshrrev_b32 v6, 3, v0"); a("v_lshlrev_b32 v6, 2, v6"); a("v_add_u32 v6, s74, v6")
    a("s_waitcnt lgkmcnt(0)")
    XV = 96
    for t in range(7):
        for b in range(2): a(f"ds_read_b32 v{XV+2*t+b}, v6 offset:{L_XD + b*448 + t*32}")
    a("v_lshrrev_b32 v4, 5, v0"); a("v_mul_lo_u32 v4, s99, v4"); a("v_and_b32 v5, 7, v0"); a("v_lshlrev_b32 v5, 5, v5"); a("v_bfe_u32 v7, v0, 4, 1"); a("v_lshlrev_b32 v7, 4, v7")
    a("v_add3_u32 v4, v4, v5, v7")
    a("s_waitcnt lgkmcnt(0)")
    for t in range(7, 14):
        for b in range(2): a(f"ds_read_b32 v{XV+2*t+b}, v6 offset:{L_XD + b*448 + t*32}")
    for t in range(14):
        A0 = 20 + 8 * (t & 1)
        if t == 7: a("s_waitcnt lgkmcnt(0)")
        for b in range(2):
            for r in range(4): a(f"v_and_b32 v{A0+4*b+r}, v{XV+2*t+b}, v{8+r}")
        a(f"s_waitcnt vmcnt({13-t})")
        for b in range(2):
            d = 12 + 4 * b
            c = "0" if t == 0 else f"v[{d}:{d+3}]"
            a(f"v_mfma_f32_16x16x32_bf16 v[{d}:{d+3}], v[{A0+4*b}:{A0+4*b+3}], v[{TR+4*t}:{TR+4*t+3}], {c}")
    a("v_mov_b32 v33, 0xfffff000")
    a("v_bfe_u32 v5, v0, 3, 1"); a("v_lshrrev_b32 v7, 5, v0"); a("v_cmp_eq_u32 vcc, v5, v7")
    for k in range(4):
        a(f"v_mov_b32_dpp v{20+k}, v{12+k} row_ror:8 {DPP}"); a(f"v_mov_b32_dpp v{24+k}, v{16+k} row_ror:8 {DPP}")
    for k in range(4): a(f"v_permlane32_swap_b32 v{20+k}, v{24+k}")
    for k in range(4):
        a(f"v_cndmask_b32 v{28+k}, v{16+k}, v{12+k}, {mLO}"); a(f"v_cndmask_b32 v{20+k}, v{20+k}, v{24+k}, {mLO}")
    for k in range(4): a(f"v_add_f32 v{28+k}, v{28+k}, v{20+k}")
    for k in range(4): a(f"v_and_or_b32 v{28+k}, v{28+k}, v33, {T[k]}")
    a("s_and_saveexec_b64 s[96:97], vcc")
    a(f"buffer_store_dwordx4 v[28:31], v4, {WS}, s98 offen sc1")
    a("s_mov_b64 exec, s[96:97]")
    a("s_cmp_eq_u32 s3, 0"); a("s_cbranch_scc1 L_qg")
    stamp(10)
    a("s_setprio 0")
    a("s_branch L_kv")
    a.label("L_qg")
    a("s_getreg_b32 s46, hwreg(HW_REG_XCC_ID)"); a("s_and_b32 s46, s46, 15")
    a("s_lshl_b32 s47, s65, 12"); a("s_or_b32 s47, s47, s64")
    a("s_lshl_b32 s96, s46, 24"); a("s_or_b32 s96, s96, s47")
    a("s_lshl_b32 s97, s60, 7"); a("s_lshl_b32 s75, s61, 2"); a("s_add_u32 s75, s75, s97"); a(f"s_add_u32 s75, s75, {XID}")
    a("v_mov_b32 v5, s96"); a("v_mov_b32 v7, 0"); a("s_mov_b64 s[98:99], exec"); a("s_mov_b64 exec, 1")
    a(f"buffer_store_dword v5, v7, {WS}, s75 offen sc1")
    a("s_mov_b64 exec, s[98:99]")
    stamp(10)
    a("s_lshl_b32 s74, s60, 1"); a("s_add_u32 s74, s74, s62"); a("s_lshl_b32 s74, s74, 13"); a(f"s_add_u32 s74, s74, {QP}"); a("s_add_u32 s75, s74, 4096")
    a("v_lshlrev_b32 v4, 4, v0"); a("s_mov_b32 s98, 0")
    QG = [100 + 4 * i for i in range(7)] + [20]
    a("v_and_b32 v5, 31, v0"); a("v_lshlrev_b32 v5, 2, v5"); a(f"s_add_u32 s96, s97, {XID}")
    if qdelay: a(f"s_sleep {qdelay}")
    a.label("L_qpoll")
    for i in range(8):
        so = "s74" if i < 4 else "s75"
        a(f"buffer_load_dwordx4 v[{QG[i]}:{QG[i]+3}], v4, {WS}, {so} offen offset:{1024*(i&3)} sc1")
    a(f"buffer_load_dword v28, v5, {WS}, s96 offen sc1")
    a("s_add_u32 s98, s98, 1"); a("s_waitcnt vmcnt(0)")
    for i in range(8):
        for k in range(4): a(f"v_xor_b32 v{QG[i]+k}, {T[k]}, v{QG[i]+k}")
    a("v_xor_b32 v29, s47, v28"); a("v_and_b32 v29, 0xffffff, v29"); a("v_min_u32 v29, 1, v29")
    or_tree([QG[i] + k for i in range(8) for k in range(4)] + [29], "v16")
    a("s_cbranch_vccz L_qgot")
    if retry_sleep: a(f"s_sleep {retry_sleep}")
    a(f"s_cmp_gt_u32 s98, {SPIN_MAX}"); a("s_cbranch_scc0 L_qpoll")
    a.label("L_qgot")
    for h in range(2):
        for k in range(4):
            a(f"v_add_f32 v{QG[h]+k}, v{QG[h]+k}, v{QG[2+h]+k}"); a(f"v_add_f32 v{QG[4+h]+k}, v{QG[4+h]+k}, v{QG[6+h]+k}")
    for h in range(2):
        for k in range(4): a(f"v_add_f32 v{QG[h]+k}, v{QG[h]+k}, v{QG[4+h]+k}")
    for h in range(2):
        a(f"v_cvt_pk_bf16_f32 v{24+2*h}, v{QG[h]}, v{QG[h]+1}"); a(f"v_cvt_pk_bf16_f32 v{25+2*h}, v{QG[h]+2}, v{QG[h]+3}")
    a("v_lshlrev_b32 v4, 3, v0")
    a(f"ds_write_b64 v4, v[24:25] offset:{L_Q}"); a(f"ds_write_b64 v4, v[26:27] offset:{L_Q+512}")
    a("v_lshrrev_b32 v28, 24, v28"); a("v_cmp_ne_u32 vcc, s46, v28"); a("s_cmp_eq_u64 vcc, 0"); a("s_cselect_b32 s96, 2, 1")
    a("s_waitcnt lgkmcnt(0)")
    a("v_mov_b32 v4, 0"); a("v_mov_b32 v5, s96")
    a(f"ds_write_b32 v4, v5 offset:{L_FLAG}")
    stamp(11)
    a("s_setprio 0")
    a("s_branch L_kv")
    a.label("L_notile")
    a("s_waitcnt lgkmcnt(0)")
    a("s_load_dwordx2 s[68:69], s[26:27], 0")
    a("s_barrier")
    srd(36, sWSp, WS_BYTES); srd(52, sX, 1792)
    late_srds()
    lane_consts()
    a("s_waitcnt lgkmcnt(0)")
    make_tags()
    a("s_setprio 0")
    a("s_branch L_kv")

    a.label("L_dpro")
    ids()
    lane_consts()
    for n, size in ((28, 0x10000000), (32, 0x10000000), (36, WS_BYTES), (52, 1792), (56, 1792)):
        a(f"s_mov_b32 s{n+2}, {size:#x}"); a(f"s_mov_b32 s{n+3}, 0x20000")
    a("s_waitcnt lgkmcnt(0)")
    for n, ptr in ((28, sK), (32, sV), (36, sWSp), (52, sX), (56, sOUT)):
        a(f"s_mov_b32 s{n}, s{ptr}"); a(f"s_mov_b32 s{n+1}, s{ptr+1}")
    a("s_load_dwordx2 s[68:69], s[26:27], 0")
    a("s_barrier")
    if codepf:
        a("s_cmp_eq_u32 s3, 15"); a("s_cbranch_scc0 L_nopf")
        a("s_getpc_b64 s[96:97]")
        a.label("L_pc")
        a(f"s_sub_u32 s96, s96, L_pc-{KNAME}"); a("s_subb_u32 s97, s97, 0")
        a("s_lshr_b32 s74, s2, 3"); a("s_mul_i32 s74, s74, 384"); a("v_lshlrev_b32 v4, 6, v0"); a("v_add_u32 v4, s74, v4")
        a("v_cmp_gt_u32 s[74:75], 6, v0"); a(f"v_cmp_gt_u32 vcc, L_codeend-{KNAME}, v4"); a("s_and_b64 vcc, vcc, s[74:75]")
        a("s_and_saveexec_b64 s[74:75], vcc")
        a("s_cbranch_execz L_pfskip")
        a("global_load_dword v36, v4, s[96:97]")
        a.label("L_pfskip")
        a("s_mov_b64 exec, s[74:75]")
        a.label("L_nopf")

    a.label("L_kv")
    loads = []
    for (base, srdn) in ((KR, K), (VR, V)):
        for t in range(4):
            for h in range(2):
                so = "s44" if t < 2 else "s45"
                imm = (t & 1) * 2048 + h * 256
                r = base + (t * 2 + h) * 4
                loads.append(f"buffer_load_dwordx4 v[{r}:{r+3}], v1, {srdn}, {so} offen offset:{imm} {kvflag}")
    a("s_cmp_lt_u32 s3, 12"); a("s_cbranch_scc1 L_nowo0")
    a("s_lshl_b32 s46, s60, 9"); a("s_lshl_b32 s97, s61, 4"); a("s_add_u32 s46, s46, s97"); a("s_mul_i32 s46, s46, 896")
    a("s_sub_u32 s97, s3, 12"); a("s_lshl_b32 s97, s97, 8"); a("s_add_u32 s46, s46, s97")
    a("v_lshrrev_b32 v4, 4, v0"); a("v_mul_u32_u24 v4, 3584, v4"); a("v_and_b32 v5, 15, v0"); a("v_lshlrev_b32 v5, 4, v5"); a("v_add_u32 v2, v4, v5")
    a.label("L_nowo0")
    a("s_and_b32 s97, s3, 0xb"); a("s_cmp_eq_u32 s97, 2"); a("s_cbranch_scc1 L_tok"); a("s_cmp_eq_u32 s97, 3"); a("s_cbranch_scc1 L_tok")
    a("s_lshl_b32 s97, s3, 2"); a("v_mov_b32 v6, s97"); a("s_mov_b32 s98, 0")
    a.label("L_tokw")
    a(f"ds_read_b32 v7, v6 offset:{L_TOK}"); a("s_add_u32 s98, s98, 1"); a("s_waitcnt lgkmcnt(0)")
    a("v_cmp_ne_u32 vcc, 0, v7"); a("s_cbranch_vccnz L_tok")
    a(f"s_cmp_gt_u32 s98, {SPIN_MAX*8}"); a("s_cbranch_scc1 L_tok")
    a("s_sleep 1"); a("s_branch L_tokw")
    a.label("L_tok")
    a("s_cmp_lt_u32 s3, 12"); a("s_cbranch_scc0 L_last")
    for n, ld in enumerate(loads):
        if n >= D: a(f"s_waitcnt vmcnt({D-1})")
        a(ld)
    a("s_branch L_rel")
    a.label("L_last")
    srd(40, sWO, 4096 * 896)
    for n, ld in enumerate(loads):
        if Dlast and n >= Dlast: a(f"s_waitcnt vmcnt({Dlast-1})")
        a(ld)
    for t in range(4):
        a(f"buffer_load_dwordx4 v[{WOR+4*t}:{WOR+4*t+3}], v2, s[40:43], s46 offen offset:{t*896} {wflag}")
    a("s_branch L_nowo")
    a.label("L_rel")
    a(f"s_waitcnt vmcnt({REL})")
    if not dynq:
        nxt = {2:4, 4:0, 0:12, 3:5, 5:1, 1:13, 6:10, 10:8, 8:14, 7:11, 11:9, 9:15}
        tab = sum(v << (4 * k) for k, v in nxt.items())
        a(f"s_mov_b32 s74, {tab & 0xffffffff:#x}"); a(f"s_mov_b32 s75, {tab >> 32:#x}"); a("s_lshl_b32 s97, s3, 2"); a("s_lshr_b64 s[74:75], s[74:75], s97")
        a("s_and_b32 s97, s74, 15"); a("s_lshl_b32 s97, s97, 2"); a("v_mov_b32 v6, s97"); a("v_mov_b32 v7, 1")
        a(f"ds_write_b32 v6, v7 offset:{L_TOK}")
    else:
        tab = sum(v << (4 * k) for k, v in enumerate(order))
        a("v_mov_b32 v6, 0"); a("v_mov_b32 v7, 1"); a("s_mov_b64 s[96:97], exec"); a("s_mov_b64 exec, 1")
        a(f"ds_add_rtn_u32 v2, v6, v7 offset:{L_NEXT}")
        a(f"s_mov_b32 s74, {tab & 0xffffffff:#x}"); a(f"s_mov_b32 s75, {tab >> 32:#x}")
        a("s_waitcnt lgkmcnt(0)")
        a("v_readfirstlane_b32 s98, v2")
        a("s_lshl_b32 s98, s98, 2"); a("s_lshr_b64 s[74:75], s[74:75], s98"); a("s_and_b32 s98, s74, 15"); a("s_lshl_b32 s98, s98, 2"); a("v_mov_b32 v6, s98")
        a(f"ds_write_b32 v6, v7 offset:{L_TOK}")
        a("s_mov_b64 exec, s[96:97]")
    a.label("L_nowo")
    a("s_cmp_lt_u32 s3, 2"); a("s_cbranch_scc1 L_havetags")
    a("s_waitcnt lgkmcnt(0)")
    make_tags()
    a.label("L_havetags")
    stamp(1)
    a("v_mov_b32 v2, 0"); a("s_mov_b32 s97, 0")
    a.label("L_qwait")
    a(f"ds_read_b32 v3, v2 offset:{L_FLAG}"); a("s_add_u32 s97, s97, 1"); a("s_waitcnt lgkmcnt(0)")
    a("v_cmp_ne_u32 vcc, 0, v3"); a("s_cbranch_vccnz L_qok")
    a(f"s_cmp_gt_u32 s97, {SPIN_MAX*8}"); a("s_cbranch_scc1 L_qok")
    a(f"s_sleep {qsleep}"); a("s_branch L_qwait")
    a.label("L_qok")
    a("v_readfirstlane_b32 s100, v3")
    a("v_and_b32 v4, 15, v0"); a("v_lshlrev_b32 v4, 4, v4")
    for h in range(2):
        for hf in range(2):
            r = QF + (h * 2 + hf) * 4
            a(f"ds_read_b128 v[{r}:{r+3}], v4 offset:{L_Q + h*512 + hf*256}")
    stamp(2)
    a("v_lshrrev_b32 v5, 5, v0"); a("v_lshlrev_b32 v5, 10, v5"); a("v_and_b32 v6, 15, v0"); a("v_lshlrev_b32 v6, 5, v6")
    a("v_bfe_u32 v7, v0, 4, 1"); a("v_lshlrev_b32 v7, 4, v7"); a("v_add3_u32 v5, v5, v6, v7")
    a(f"s_mul_i32 s96, s3, {OLS}"); a("v_add_u32 v5, s96, v5")
    a("v_and_b32 v6, 8, v0"); a("s_lshl_b32 s96, s3, 4"); a("v_add_u32 v6, s96, v6")
    a("v_and_b32 v7, 0x37, v0"); a("v_cmp_eq_u32 s[46:47], 0, v7")
    ACC = 116
    a("s_cmp_lt_u32 s3, 12"); a("s_cbranch_scc1 L_kw0"); a("s_waitcnt vmcnt(12) lgkmcnt(0)"); a("s_branch L_kw1")
    a.label("L_kw0"); a("s_waitcnt vmcnt(8) lgkmcnt(0)"); a.label("L_kw1")
    for t in range(4):
        for hf in range(2):
            for r in range(4):
                for h in range(2):
                    kreg = KR + (t * 2 + hf) * 4 + r
                    qreg = QF + (h * 2 + hf) * 4 + r
                    acc = ACC + 2 * t + h
                    if hf == 0 and r == 0: a(f"v_dot2_f32_bf16 v{acc}, v{kreg}, v{qreg}, 0")
                    else: a(f"v_dot2c_f32_bf16 v{acc}, v{kreg}, v{qreg}")
    U, W = 124, KR
    for t in range(4): a(f"v_cndmask_b32 v{U+t}, v{ACC+2*t}, v{ACC+2*t+1}, {mB3}")
    for t in range(4): a(f"v_cndmask_b32 v{W+t}, v{ACC+2*t+1}, v{ACC+2*t}, {mB3}")
    for t in range(4): a(f"v_add_f32_dpp v{U+t}, v{W+t}, v{U+t} row_ror:8 {DPP}")
    for m in ("quad_perm:[1,0,3,2]", "quad_perm:[2,3,0,1]", "row_half_mirror"):
        for t in range(4): a(f"v_add_f32_dpp v{U+t}, v{U+t}, v{U+t} {m} {DPP}")
    for t in range(4): a(f"v_cvt_pk_bf16_f32 v{U+t}, v{U+t}, v{U+t}")
    for t in range(4): a(f"v_and_b32 v{U+t}, 0xffff0000, v{U+t}")
    MX, TMP = 116, 117
    a(f"v_max3_f32 v{MX}, v{U}, v{U+1}, v{U+2}"); a(f"v_max_f32 v{MX}, v{MX}, v{U+3}")
    a(f"v_mov_b32 v{TMP}, v{MX}"); a(f"v_permlane16_swap_b32 v{MX}, v{TMP}"); a(f"v_max_f32 v{MX}, v{MX}, v{TMP}")
    a(f"v_mov_b32 v{TMP}, v{MX}"); a(f"v_permlane32_swap_b32 v{MX}, v{TMP}"); a(f"v_max_f32 v{MX}, v{MX}, v{TMP}")
    a("s_mov_b32 s96, 0x3db8aa3b")
    for t in range(4): a(f"v_sub_f32 v{U+t}, v{U+t}, v{MX}")
    for t in range(4): a(f"v_mul_f32 v{U+t}, s96, v{U+t}")
    for t in range(4): a(f"v_exp_f32 v{U+t}, v{U+t}")
    AO = KR + 4
    for t in range(4): a(f"v_cvt_pk_bf16_f32 v{W+t}, v{U+t}, v{U+t}")
    LS = 117; T2 = 118
    a(f"v_add_f32 v{LS}, v{U}, v{U+1}"); a(f"v_add_f32 v{T2}, v{U+2}, v{U+3}")
    for t in range(4):
        for r in range(4): a(f"v_and_b32 v{AO+4*t+r}, v{W+t}, v{8+r}")
        if t == 0: a(f"v_add_f32 v{LS}, v{LS}, v{T2}")
        if t == 1: a(f"v_mov_b32 v{T2}, v{LS}")
        if t == 2: a(f"v_permlane16_swap_b32 v{LS}, v{T2}"); a(f"v_add_f32 v{LS}, v{LS}, v{T2}")
        if t == 3: a(f"v_mov_b32 v{T2}, v{LS}")
    a(f"v_permlane32_swap_b32 v{LS}, v{T2}"); a(f"v_add_f32 v{LS}, v{LS}, v{T2}")
    a("s_mov_b64 s[74:75], exec"); a("s_mov_b64 exec, s[46:47]")
    a(f"ds_write_b64 v6, v[{MX}:{LS}] offset:{L_ST}")
    a("s_mov_b64 exec, s[74:75]")
    for t in range(4):
        a(f"s_waitcnt vmcnt({12 - 2*(t+1)})")
        a("s_cmp_lt_u32 s3, 12"); a(f"s_cbranch_scc0 L_vw{t}")
        a(f"s_waitcnt vmcnt({8 - 2*(t+1)})")
        a.label(f"L_vw{t}")
        for hf in range(2):
            vr = VR + (t * 2 + hf) * 4
            d = 12 + 4 * hf
            c = "0" if t == 0 else f"v[{d}:{d+3}]"
            a(f"v_mfma_f32_16x16x32_bf16 v[{d}:{d+3}], v[{AO+4*t}:{AO+4*t+3}], v[{vr}:{vr+3}], {c}")
    a(f"ds_write_b128 v5, v[12:15] offset:{L_OL}")
    a(f"ds_write_b128 v5, v[16:19] offset:{L_OL + 512}")
    stamp(3)
    a("s_cmp_eq_u32 s3, 1"); a("s_cbranch_scc0 L_ffn2_done"); a("s_cmp_lt_u32 s2, 224"); a("s_cbranch_scc0 L_ffn2_done")
    a("s_and_b32 s74, s2, 1"); a("s_cmp_eq_u32 s74, 0"); a("s_cbranch_scc1 L_ffn2")
    a.label("L_ffn2_done")
    a("s_sub_u32 s74, s3, 4"); a("s_cmp_lt_u32 s74, 4"); a("s_cbranch_scc0 L_bar2")
    a("v_and_b32 v4, 31, v0"); a("v_lshlrev_b32 v5, 4, v4"); a("v_lshrrev_b32 v6, 5, v0"); a(f"v_mul_u32_u24 v7, {8*OLS}, v6"); a("v_add_u32 v5, v5, v7")
    a("s_lshr_b32 s75, s74, 1"); a("s_lshl_b32 s96, s75, 10"); a("s_and_b32 s97, s74, 1"); a("s_lshl_b32 s97, s97, 9"); a("s_add_u32 s96, s96, s97"); a("v_add_u32 v5, s96, v5")
    a("v_lshlrev_b32 v7, 3, v6"); a("v_add_u32 v7, v7, v0"); a("v_and_b32 v7, 15, v7"); a("v_lshlrev_b32 v7, 4, v7"); a("s_lshl_b32 s96, s75, 3")
    a("v_lshlrev_b32 v3, 6, v6")
    a("v_add_u32 v6, s96, v7")
    a("v_lshrrev_b32 v7, 2, v4"); a(f"v_mul_u32_u24 v7, {R1}, v7"); a("v_and_b32 v4, 3, v0"); a("v_lshlrev_b32 v4, 4, v4"); a("v_add3_u32 v7, v7, v4, v3")
    a("s_lshl_b32 s75, s60, 5"); a("s_lshl_b32 s96, s74, 3"); a("s_add_u32 s75, s75, s96"); a(f"s_mul_i32 s75, s75, {R1}")
    a("s_lshr_b32 s96, s63, 2"); a("s_lshl_b32 s96, s96, 3"); a("s_lshl_b32 s97, s62, 2"); a("s_add_u32 s96, s96, s97"); a("s_and_b32 s97, s63, 3"); a("s_add_u32 s96, s96, s97")
    a("s_lshl_b32 s96, s96, 7"); a("s_add_u32 s75, s75, s96"); a(f"s_add_u32 s75, s75, {P1}")
    a("v_mov_b32 v33, 0xfffff000"); a("s_mov_b32 s96, 0x3db8aa3b")
    a("s_setprio 3")
    a.label("L_bar2")
    a("s_waitcnt lgkmcnt(0)")
    a("s_barrier")
    stamp(4)
    a("s_cmp_lt_u32 s74, 4"); a("s_cbranch_scc0 L_notcomb")
    a(f"ds_read_b64 v[28:29], v6 offset:{L_ST}")
    OR = 36
    for j8 in range(8): a(f"ds_read_b128 v[{OR+4*j8}:{OR+4*j8+3}], v5 offset:{L_OL + j8*OLS}")
    a("s_waitcnt lgkmcnt(8)")
    a("v_mov_b32 v34, v28")
    for m in ("row_ror:8", "row_ror:4", "row_ror:2", "row_ror:1"):
        a(f"v_max_f32_dpp v34, v34, v34 {m} {DPP}")
    a("v_sub_f32 v35, v28, v34"); a("v_mul_f32 v35, s96, v35"); a("v_exp_f32 v35, v35")
    a("v_mul_f32 v29, v35, v29")
    rors = ["row_ror:8", "row_ror:4", "row_ror:2", "row_ror:1"]
    for j8 in range(8):
        a(f"s_waitcnt lgkmcnt({7-j8})")
        for k in range(4):
            op = "v_mul_f32_dpp" if j8 == 0 else "v_fmac_f32_dpp"
            a(f"{op} v{20+k}, v35, v{OR+4*j8+k} row_newbcast:{j8} {DPP}")
        if j8 < 4: a(f"v_add_f32_dpp v29, v29, v29 {rors[j8]} {DPP}")
    for k in range(4): a(f"v_mov_b32 v{24+k}, v{20+k}")
    for k in range(4): a(f"v_permlane32_swap_b32 v{20+k}, v{24+k}")
    for k in range(4): a(f"v_add_f32 v{20+k}, v{20+k}, v{24+k}")
    a(f"v_cndmask_b32 v20, v34, v20, {mLO}"); a(f"v_cndmask_b32 v21, v29, v21, {mLO}"); a(f"v_cndmask_b32 v22, v34, v22, {mLO}"); a(f"v_cndmask_b32 v23, v29, v23, {mLO}")
    for k in range(4): a(f"v_and_or_b32 v{20+k}, v{20+k}, v33, {T[k]}")
    a("s_cmp_eq_u32 s100, 2"); a("s_cbranch_scc1 L_p1fast")
    a(f"buffer_store_dwordx4 v[20:23], v7, {WS}, s75 offen sc1")
    a("s_branch L_p1pub")
    a.label("L_p1fast")
    a(f"buffer_store_dwordx4 v[20:23], v7, {WS}, s75 offen")
    a.label("L_p1pub")
    lds_inc(L_PUBCNT)
    a("s_setprio 0")
    stamp(5)
    a("s_branch L_aux_done")
    a.label("L_notcomb")
    a("s_cmp_lt_u32 s3, 12"); a("s_cbranch_scc1 L_aux")

    a("s_setprio 3")
    GR = 36
    a("s_lshl_b32 s74, s60, 5"); a("s_add_u32 s74, s74, s61"); a(f"s_mul_i32 s74, s74, {R1}"); a(f"s_add_u32 s74, s74, {P1}")
    a("v_lshlrev_b32 v4, 4, v0")
    a("s_mov_b32 s98, 0")
    a("s_cmp_eq_u32 s100, 2"); a("s_cbranch_scc1 L_p1df")
    lds_wait_ge(L_PUBCNT, 4, "L_pubw")
    if p1delay: a(f"s_sleep {p1delay}")
    a.label("L_p1df")
    stamp(11)
    def p1ld():
        for i in range(4): a(f"buffer_load_dwordx4 v[{GR+4*i}:{GR+4*i+3}], v4, {WS}, s74 offen offset:{1024*i} sc1")
    p1ld()
    pub_lane_addr("v5", "v6", "v7")
    a("s_sub_u32 s75, s3, 12"); a(f"s_mul_i32 s99, s75, {4*R2}"); a("s_lshl_b32 s97, s60, 5"); a("s_add_u32 s97, s97, s61"); a("s_lshl_b32 s97, s97, 7"); a("s_add_u32 s99, s99, s97"); a(f"s_add_u32 s99, s99, {P2}")
    a("v_bfe_u32 v6, v0, 3, 1"); a("v_lshlrev_b32 v6, 7, v6"); a("v_lshrrev_b32 v16, 4, v0"); a("v_lshlrev_b32 v16, 2, v16"); a("v_add_u32 v6, v6, v16"); a("v_add_u32 v7, 64, v6")
    a("v_mov_b32 v33, 0xfffff000"); a("s_mov_b32 s96, 0x3db8aa3b")
    a("s_cmp_eq_u32 s3, 15"); a("s_cselect_b32 s97, 8, 16"); a("v_and_b32 v20, 15, v0"); a("v_cmp_gt_u32 s[46:47], s97, v20")
    a("s_branch L_p1chk")
    a.label("L_p1poll")
    a("s_cmp_eq_u32 s100, 2"); a("s_cbranch_scc1 L_p1rf")
    if p1retry: a(f"s_sleep {p1retry}")
    a.label("L_p1rf")
    p1ld()
    a.label("L_p1chk")
    a("s_add_u32 s98, s98, 1")
    a("s_waitcnt vmcnt(0)")
    untag(GR, 4)
    or_tree(range(GR, GR + 16), "v16")
    a("s_cbranch_vccz L_p1ok")
    a(f"s_cmp_gt_u32 s98, {SPIN_MAX}"); a("s_cbranch_scc0 L_p1poll")
    a.label("L_p1ok")
    stamp(6)
    if stamps: a("s_mov_b32 s101, s98")
    G = GR
    a(f"v_max3_f32 v16, v{G}, v{G+4}, v{G+8}"); a(f"v_max_f32 v16, v16, v{G+12}")
    a(f"v_max_f32_dpp v16, v16, v16 row_ror:8 {DPP}")
    a("v_mov_b32 v17, v16"); a("v_permlane16_swap_b32 v16, v17"); a("v_max_f32 v16, v16, v17")
    for i in range(4): a(f"v_sub_f32 v{20+i}, v{G+4*i}, v16")
    for i in range(4): a(f"v_mul_f32 v{20+i}, s96, v{20+i}")
    for i in range(4): a(f"v_exp_f32 v{20+i}, v{20+i}")
    a(f"v_mul_f32 v17, v20, v{G+1}")
    for i in range(1, 4): a(f"v_fmac_f32 v17, v{20+i}, v{G+4*i+1}")
    for t in range(4): a(f"v_mul_f32_dpp v{24+t}, v20, v{G+t} row_shl:4 {DPP}")
    a(f"v_add_f32_dpp v17, v17, v17 row_ror:8 {DPP}")
    for i in range(1, 4):
        for t in range(4): a(f"v_fmac_f32_dpp v{24+t}, v{20+i}, v{G+4*i+t} row_shl:4 {DPP}")
        if i == 1: a("v_mov_b32 v18, v17")
        if i == 2: a("v_permlane16_swap_b32 v17, v18"); a("v_add_f32 v17, v17, v18")
        if i == 3: a("v_rcp_f32 v17, v17")
    for t in range(4): a(f"v_add_f32_dpp v{24+t}, v{24+t}, v{24+t} row_ror:8 {DPP}")
    a("v_permlane16_swap_b32 v24, v25"); a("v_permlane16_swap_b32 v26, v27")
    a("v_add_f32 v24, v24, v25"); a("v_add_f32 v26, v26, v27")
    a(f"v_mul_f32_dpp v24, v17, v24 row_shl:4 {DPP}"); a(f"v_mul_f32_dpp v26, v17, v26 row_shl:4 {DPP}")
    a("v_cvt_pk_bf16_f32 v24, v24, v24"); a("v_cvt_pk_bf16_f32 v26, v26, v26")
    a("ds_bpermute_b32 v20, v6, v24"); a("ds_bpermute_b32 v21, v7, v24"); a("ds_bpermute_b32 v22, v6, v26"); a("ds_bpermute_b32 v23, v7, v26")
    AR = 68
    for t in range(4):
        a(f"s_waitcnt lgkmcnt({3-t})")
        for r in range(4): a(f"v_and_b32 v{AR+4*t+r}, v{20+t}, v{8+r}")
        c = "0" if t == 0 else "v[12:15]"
        a(f"v_mfma_f32_16x16x32_bf16 v[12:15], v[{AR+4*t}:{AR+4*t+3}], v[{WOR+4*t}:{WOR+4*t+3}], {c}")
    for i in range(4): a(f"v_and_or_b32 v{16+i}, v{12+i}, v33, {T[i]}")
    a("s_mov_b64 s[74:75], exec"); a("s_mov_b64 exec, s[46:47]")
    a(f"buffer_store_dwordx4 v[16:19], v5, {WS}, s99 offen sc1")
    a("s_mov_b64 exec, s[74:75]")
    lds_inc(L_P2CNT)
    a("s_setprio 0")
    stamp(7)
    a("s_branch L_aux_done")

    a.label("L_aux")
    a("s_cmp_eq_u32 s3, 1"); a("s_cbranch_scc0 L_ygather")
    a("s_cmp_lt_u32 s2, 224"); a("s_cbranch_scc0 L_aux_done")
    a("s_and_b32 s74, s2, 1"); a("s_cmp_eq_u32 s74, 0"); a("s_cbranch_scc0 L_aux_done")
    pub_lane_addr("v4", "v6", "v7")
    a("s_lshr_b32 s74, s2, 1"); a("s_lshl_b32 s74, s74, 7"); a(f"s_add_u32 s74, s74, {YP}")
    for c in range(4):
        if c == 3:
            a("v_and_b32 v5, 15, v0"); a("v_cmp_gt_u32 vcc, 8, v5"); a("s_and_saveexec_b64 s[96:97], vcc")
        a(f"buffer_store_dwordx4 v[{100+4*c}:{103+4*c}], v4, {WS}, s74 offen sc1")
        if c == 3: a("s_mov_b64 exec, s[96:97]")
        else: a(f"s_add_u32 s74, s74, {4*R2}")
    a("s_branch L_aux_done")

    a.label("L_ygather")
    a("s_cmp_lt_u32 s2, 28"); a("s_cbranch_scc0 L_exit")
    a("s_sub_u32 s75, s3, 1"); a("s_cmp_eq_u32 s3, 0"); a("s_cselect_b32 s75, 0, s75")
    a("s_sub_u32 s74, s3, 5"); a("s_cmp_ge_u32 s3, 8"); a("s_cselect_b32 s75, s74, s75")
    a(f"s_mul_i32 s74, s2, {R2}"); a("s_lshl_b32 s96, s75, 11"); a("s_add_u32 s74, s74, s96"); a(f"s_add_u32 s74, s74, {YP}")
    a("v_lshlrev_b32 v4, 4, v0"); a("s_mov_b32 s98, 0")
    col_addr("v5", "v6"); a("s_lshl_b32 s75, s75, 7"); a("v_add_u32 v5, s75, v5")
    lds_wait_ge(L_PUBCNT, 4, "L_ypw", 2)
    if p1delay: a(f"s_sleep {p1delay}")
    a.label("L_ypoll")
    for i in range(2): a(f"buffer_load_dwordx4 v[{36+4*i}:{39+4*i}], v4, {WS}, s74 offen offset:{1024*i} sc1")
    a("s_add_u32 s98, s98, 1"); a("s_waitcnt vmcnt(0)")
    untag(36, 2)
    or_tree(range(36, 44), "v16")
    a("s_cbranch_vccz L_yok")
    a(f"s_sleep {max(p1retry, 8)}")
    a(f"s_cmp_gt_u32 s98, {SPIN_MAX}"); a("s_cbranch_scc0 L_ypoll")
    a.label("L_yok")
    for k in range(4): a(f"v_add_f32 v{36+k}, v{36+k}, v{40+k}")
    reduce4(36)
    a("v_and_b32 v6, 8, v0"); a("v_cmp_eq_u32 vcc, 0, v6"); a("s_and_saveexec_b64 s[74:75], vcc")
    a(f"ds_write_b32 v5, v36 offset:{L_YR}")
    a("s_mov_b64 exec, s[74:75]")
    a("s_waitcnt lgkmcnt(0)")
    lds_inc(L_YCNT)
    a("s_cmp_eq_u32 s3, 0"); a("s_cbranch_scc0 L_final")
    a("s_mul_hi_u32 s74, s2, 0x12492493")
    a("s_mul_i32 s75, s74, 14"); a("s_sub_u32 s75, s2, s75")
    a("s_mul_i32 s74, s74, 896"); a("s_lshl_b32 s75, s75, 6"); a("s_add_u32 s99, s74, s75")
    a("v_and_b32 v50, 31, v0"); a("v_lshlrev_b32 v51, 1, v50")
    a(f"buffer_load_ushort v52, v51, {XS}, s99 offen")
    lds_wait_ge(L_YCNT, 7, "L_ywait")
    a("v_lshlrev_b32 v53, 2, v50")
    for k in range(7): a(f"ds_read_b32 v{36+k}, v53 offset:{L_YR + 128*k}")
    a("s_waitcnt lgkmcnt(0)")
    a("v_add_f32 v36, v36, v37"); a("v_add_f32 v38, v38, v39"); a("v_add_f32 v40, v40, v41"); a("v_add_f32 v36, v36, v42")
    a("v_add_f32 v36, v36, v38"); a("v_add_f32 v36, v36, v40")
    a("v_cvt_pk_bf16_f32 v36, v36, v36"); a("v_and_b32 v36, 0xffff0000, v36")
    a("v_mul_f32 v37, 0xbfb8aa3b, v36"); a("v_exp_f32 v37, v37"); a("v_add_f32 v37, 1.0, v37"); a("v_rcp_f32 v37, v37"); a("v_mul_f32 v37, v36, v37")
    a("v_cvt_pk_bf16_f32 v37, v37, v37"); a("v_and_b32 v54, 0xffff0000, v37")
    a("s_waitcnt vmcnt(0)"); a("v_lshlrev_b32 v52, 16, v52")
    a("v_lshrrev_b32 v55, 5, v0"); a("v_lshlrev_b32 v55, 10, v55"); a("v_add_u32 v55, v55, v53")
    a("s_branch L_final")

    a.label("L_aux_done")
    a("s_cmp_lt_u32 s2, 28"); a("s_cbranch_scc0 L_exit")
    a.label("L_final")
    a(f"s_mul_i32 s74, s2, {R2}"); a("s_lshl_b32 s75, s3, 11"); a("s_add_u32 s74, s74, s75"); a(f"s_add_u32 s74, s74, {P2}")
    a("v_lshlrev_b32 v4, 4, v0"); a("s_mov_b32 s98, 0")
    col_addr("v5", "v6"); a("s_lshl_b32 s75, s3, 7"); a("v_add_u32 v5, s75, v5")
    a("v_and_b32 v6, 8, v0"); a("v_cmp_eq_u32 s[46:47], 0, v6")
    lds_wait_ge(L_P2CNT, 4, "L_p2w", 1)
    if stamps:
        a("s_cmp_lt_u32 s3, 2"); a("s_cbranch_scc1 L_nost"); a("s_cmp_eq_u32 s3, 12"); a("s_cbranch_scc1 L_nost")
        stamp(11)
        a.label("L_nost")
    a.label("L_fpoll")
    for i in range(2): a(f"buffer_load_dwordx4 v[{36+4*i}:{39+4*i}], v4, {WS}, s74 offen offset:{1024*i} sc1")
    a("s_add_u32 s98, s98, 1"); a("s_waitcnt vmcnt(0)")
    untag(36, 2)
    or_tree(range(36, 44), "v16")
    a("s_cbranch_vccz L_fok")
    a(f"s_cmp_gt_u32 s98, {SPIN_MAX}"); a("s_cbranch_scc0 L_fpoll")
    a.label("L_fok")
    stamp(8)
    if stamps:
        a("s_cmp_eq_u32 s3, 12"); a("s_cselect_b32 s101, s101, s98")
    for k in range(4): a(f"v_add_f32 v{36+k}, v{36+k}, v{40+k}")
    reduce4(36)
    a("s_mov_b64 s[74:75], exec"); a("s_mov_b64 exec, s[46:47]")
    a(f"ds_write_b32 v5, v36 offset:{L_SR}")
    a("s_mov_b64 exec, s[74:75]")
    a("s_waitcnt lgkmcnt(0)")
    a("s_barrier")
    a("s_cmp_eq_u32 s3, 0"); a("s_cbranch_scc1 L_epi")
    a("s_cmp_eq_u32 s3, 1"); a("s_cbranch_scc0 L_exit"); a("s_cmp_eq_u32 s2, 0"); a("s_cbranch_scc0 L_exit")
    a("s_mov_b64 exec, 1")
    a("v_mov_b32 v4, s68"); a("v_mov_b32 v5, s69"); a("v_mov_b32 v6, 0")
    a(f"buffer_store_dwordx2 v[4:5], v6, {WS}, 0 offen")
    a("s_branch L_exit")
    a.label("L_epi")
    for k in range(8): a(f"ds_read_b32 v{36+k}, v55 offset:{L_SR + 128*k}")
    a("s_waitcnt lgkmcnt(4)")
    a("v_add_f32 v36, v36, v37"); a("v_add_f32 v38, v38, v39")
    a("s_waitcnt lgkmcnt(0)")
    a("v_add_f32 v40, v40, v41"); a("v_add_f32 v42, v42, v43")
    a("v_add_f32 v36, v36, v38"); a("v_add_f32 v40, v40, v42"); a("v_add_f32 v36, v36, v40")
    a("v_mov_b32 v37, v36"); a("v_permlane32_swap_b32 v36, v37"); a("v_add_f32 v36, v36, v37")
    a("v_cvt_pk_bf16_f32 v36, v36, v36"); a("v_and_b32 v36, 0xffff0000, v36")
    a("v_mul_f32 v36, v36, v54"); a("v_cvt_pk_bf16_f32 v36, v36, v36"); a("v_and_b32 v36, 0xffff0000, v36")
    a("v_add_f32 v36, v52, v36"); a("v_cvt_pk_bf16_f32 v36, v36, v36")
    a(f"s_mov_b64 exec, {mLO}")
    a(f"buffer_store_short v36, v51, {OUT}, s99 offen")
    a("s_branch L_exit")

    a.label("L_ffn2")
    a("s_waitcnt lgkmcnt(0)")
    srd(48, sWD, 1792 * 896)
    a("s_lshr_b32 s75, s2, 1"); a(f"s_mul_i32 s74, s75, {16*896}")
    a("v_lshrrev_b32 v6, 2, v0"); a("v_mul_u32_u24 v6, 7168, v6"); a("v_and_b32 v5, 3, v0"); a("v_lshlrev_b32 v5, 4, v5"); a("v_add_u32 v6, v6, v5")
    a("s_lshl_b32 s75, s75, 6"); a(f"s_add_u32 s75, s75, {FP}"); a("s_mov_b32 s98, 0")
    G_, U_, X_, HV = 100, 104, 108, 112
    a(f"buffer_load_dwordx4 v[{G_}:{G_+3}], v6, {WS}, s75 offen sc1")
    a("v_lshrrev_b32 v4, 4, v0"); a("v_mul_u32_u24 v4, 3584, v4"); a("v_and_b32 v5, 15, v0"); a("v_lshlrev_b32 v5, 4, v5"); a("v_add_u32 v4, v4, v5")
    WD16 = lambda t, c: 36 + (t * 4 + c) * 4
    for t in range(4):
        for c in range(4):
            r = WD16(t, c)
            a(f"buffer_load_dwordx4 v[{r}:{r+3}], v4, {WD}, s74 offen offset:{t*896 + c*256} {wflag}")
    a("s_waitcnt vmcnt(16)")
    a("s_branch L_fchk")
    a.label("L_fpoll2")
    if retry_sleep: a(f"s_sleep {retry_sleep}")
    a(f"buffer_load_dwordx4 v[{G_}:{G_+3}], v6, {WS}, s75 offen sc1")
    a("s_waitcnt vmcnt(0)")
    a.label("L_fchk")
    a("s_add_u32 s98, s98, 1")
    untag(G_, 1)
    or_tree(range(G_, G_ + 4), "v16")
    a("s_cbranch_vccz L_fgot")
    a(f"s_cmp_gt_u32 s98, {SPIN_MAX}"); a("s_cbranch_scc0 L_fpoll2")
    a.label("L_fgot")
    for k in range(4): a(f"v_add_f32_dpp v{G_+k}, v{G_+k}, v{G_+k} row_ror:8 {DPP}")
    for k in range(4): a(f"v_mov_b32 v{U_+k}, v{G_+k}")
    for k in range(4): a(f"v_permlane16_swap_b32 v{G_+k}, v{U_+k}")
    for k in range(4): a(f"v_add_f32 v{G_+k}, v{G_+k}, v{U_+k}")
    for k in range(4): a(f"v_mov_b32 v{U_+k}, v{G_+k}")
    for k in range(4): a(f"v_permlane32_swap_b32 v{G_+k}, v{U_+k}")
    for k in range(4): a(f"v_cvt_pk_bf16_f32 v{G_+k}, v{G_+k}, v{U_+k}")
    for k in range(4):
        a(f"v_and_b32 v{U_+k}, 0xffff0000, v{G_+k}"); a(f"v_lshlrev_b32 v{G_+k}, 16, v{G_+k}")
    a("s_mov_b32 s96, 0x3d372713"); a("s_mov_b32 s97, 0xc0135761")
    for k in range(4): a(f"v_mul_f32 v{X_+k}, v{G_+k}, v{G_+k}")
    for k in range(4): a(f"v_fma_f32 v{X_+k}, v{X_+k}, s96, 1.0")
    for k in range(4): a(f"v_mul_f32 v{X_+k}, v{X_+k}, v{G_+k}")
    for k in range(4): a(f"v_mul_f32 v{X_+k}, s97, v{X_+k}")
    for k in range(4): a(f"v_exp_f32 v{X_+k}, v{X_+k}")
    for k in range(4): a(f"v_add_f32 v{X_+k}, 1.0, v{X_+k}")
    for k in range(4): a(f"v_rcp_f32 v{X_+k}, v{X_+k}")
    for k in range(4): a(f"v_mul_f32 v{X_+k}, v{X_+k}, v{G_+k}")
    for k in range(4): a(f"v_cvt_pk_bf16_f32 v{X_+k}, v{X_+k}, v{X_+k}")
    for k in range(4): a(f"v_and_b32 v{X_+k}, 0xffff0000, v{X_+k}")
    for k in range(4): a(f"v_mul_f32 v{X_+k}, v{X_+k}, v{U_+k}")
    for k in range(4): a(f"v_cvt_pk_bf16_f32 v{X_+k}, v{X_+k}, v{X_+k}")
    a("v_lshlrev_b32 v5, 4, v0"); a("v_cmp_gt_u32 vcc, 8, v0"); a("s_and_saveexec_b64 s[96:97], vcc")
    a(f"ds_write_b128 v5, v[{X_}:{X_+3}] offset:{L_HD}")
    a("s_mov_b64 exec, s[96:97]")
    a("v_bfe_u32 v5, v0, 3, 1"); a("v_lshlrev_b32 v5, 6, v5"); a("v_lshrrev_b32 v7, 4, v0"); a("v_lshlrev_b32 v7, 4, v7"); a("v_add_u32 v5, v5, v7")
    a("s_waitcnt lgkmcnt(0)")
    a(f"ds_read_b128 v[{HV}:{HV+3}], v5 offset:{L_HD}")
    a("v_mov_b32 v116, 0xfffff000")
    a("s_waitcnt lgkmcnt(0) vmcnt(0)")
    for t in range(4):
        for r in range(4): a(f"v_and_b32 v{20+4*t+r}, v{HV+t}, v{8+r}")
    for half in range(2):
        for cc in range(2):
            c = 2 * half + cc
            for t in range(4):
                r = WD16(t, c)
                src = "0" if t == 0 else f"v[{12+4*cc}:{15+4*cc}]"
                a(f"v_mfma_f32_16x16x32_bf16 v[{12+4*cc}:{15+4*cc}], v[{20+4*t}:{23+4*t}], v[{r}:{r+3}], {src}")
        for cc in range(2):
            c = 2 * half + cc
            for k in range(4): a(f"v_and_or_b32 v{100+4*c+k}, v{12+4*cc+k}, v116, {T[k]}")
    stamp(11)
    a("s_branch L_ffn2_done")

    a.label("L_exit")
    if stamps:
        a("s_memrealtime s[96:97]")
        a("s_waitcnt lgkmcnt(0)")
        a("s_lshl_b32 s74, s2, 4"); a("s_add_u32 s74, s74, s3"); a("s_lshl_b32 s74, s74, 6"); a(f"s_add_u32 s74, s74, {STAMP}")
        a("s_mov_b64 exec, 1")
        a("v_mov_b32 v4, 0")
        for k in range(10): a(f"v_mov_b32 v{20+k}, s{76+2*k}")
        a("v_mov_b32 v30, s96"); a("s_getreg_b32 s75, hwreg(HW_REG_XCC_ID)"); a("v_mov_b32 v31, s75")
        a("v_mov_b32 v32, s101"); a(f"buffer_store_dword v32, v4, {WS}, s74 offen offset:48")
        for q in range(3):
            a(f"buffer_store_dwordx4 v[{20+4*q}:{23+4*q}], v4, {WS}, s74 offen offset:{16*q}")
    a.label("L_end")
    a("s_endpgm")
    a.label("L_codeend")

    head = [
        "; Fused decode step: LayerNorm -> {GQA sliding-window attention, GEGLU FFN} -> x + s*silu(f)",
        "; 256 workgroups x 16 waves; cross-workgroup hand-offs use self-tagged 16-byte granules in d_ws.",
        f"; @launch grid=(256,1,1) block=(1024,1,1) lds={LDS_BYTES}",
        '.amdgcn_target "amdgcn-amd-amdhsa--gfx950"',
        ".text", f".globl {KNAME}", ".p2align 8", f".type {KNAME},@function", f"{KNAME}:"]
    tail = ['.section .rodata,"a"', ".p2align 6", f".amdhsa_kernel {KNAME}",
            "  .amdhsa_next_free_vgpr 128", "  .amdhsa_next_free_sgpr 102", "  .amdhsa_accum_offset 128",
            "  .amdhsa_group_segment_fixed_size 0", "  .amdhsa_kernarg_size 96", "  .amdhsa_user_sgpr_count 2",
            "  .amdhsa_user_sgpr_kernarg_segment_ptr 1", "  .amdhsa_system_sgpr_workgroup_id_x 1", ".end_amdhsa_kernel"]
    return "\n".join(head) + "\n" + a.text() + "\n".join(tail) + "\n"

if __name__ == "__main__":
    print(gen(), end="")
```

```python
import sys
sys.path.insert(0, "gen")
from asmlib import Asm

KNAME = "recurrent_scan__sliding_block_cached__geglu_ffn__decode_kernel"

XID = 0x200
QP = 0x1000
FP = 0x21000
P1 = 0x40000
P2 = 0x150000
YP = 0x240000
STAMP = 0x400000
R1 = 4224
R2 = 32896
WS_BYTES = 0x40000000

L_FLAG = 0
L_YCNT = 4
L_PUBCNT = 8
L_P2CNT = 12
L_NEXT = 16
L_TOK = 64
L_Q = 128
L_XD = 1216
L_HD = 3008
L_ST = 3136
L_SR = 3904
L_YR = 5952
L_OL = 6976
OLS = 2064
LDS_BYTES = L_OL + 16 * OLS

DPP = "row_mask:0xf bank_mask:0xf"
SPIN_MAX = 200000

def gen(stamps=False, kvflag="nt", wflag="nt", D=8, REL=7, qdelay=55, retry_sleep=16, qsleep=2, p1delay=32, p1retry=16,
        codepf=True, rot=(1, 0, 0), ln1=True, dynq=True, Dlast=12, perm=False, Deven=None, RELeven=None, Dlast_even=None, tlbwarm=False, fw=3, order=(4, 5, 10, 11, 0, 1, 8, 9, 12, 13, 14, 15)):
    assert D <= 8
    a = Asm()
    sX, sK, sV, sWQ, sWO, sWG, sWU, sWD, sOUT, sDBG, sWSp = 4, 6, 8, 10, 12, 16, 18, 20, 22, 24, 26
    K, V, WS, TILE, WD, XS, OUT = "s[28:31]", "s[32:35]", "s[36:39]", "s[40:43]", "s[48:51]", "s[52:55]", "s[56:59]"
    T = ["s64", "s65", "s66", "s67"]
    mB3, mLO = "s[70:71]", "s[72:73]"
    KR, VR, WOR, QF = 36, 68, 100, 20

    def stamp(k):
        if stamps:
            k = {9: 6, 10: 7, 11: 9}.get(k, k)
            a(f"s_memrealtime s[{76+2*k}:{77+2*k}]")
    def srd(n, ptr, size):
        a(f"s_mov_b32 s{n}, s{ptr}"); a(f"s_mov_b32 s{n+1}, s{ptr+1}"); a(f"s_mov_b32 s{n+2}, {size:#x}"); a(f"s_mov_b32 s{n+3}, 0x20000")
    def ids():
        a("s_and_b32 s60, s2, 7"); a("s_lshr_b32 s61, s2, 3"); a("s_lshr_b32 s62, s61, 4"); a("s_and_b32 s63, s61, 15")
    def lane_consts():
        a("v_and_b32 v4, 8, v0"); a(f"v_cmp_ne_u32 {mB3}, 0, v4")
        a(f"v_cmp_gt_u32 {mLO}, 32, v0")
        a("v_and_b32 v4, 7, v0"); a("v_and_b32 v5, 1, v0"); a("v_cmp_eq_u32 vcc, 1, v5")
        a("v_mov_b32 v6, 0xffff"); a("v_mov_b32 v7, 0xffff0000"); a("v_cndmask_b32 v6, v6, v7, vcc")
        a("v_lshrrev_b32 v4, 1, v4")
        for r in range(4):
            a(f"v_cmp_eq_u32 vcc, {r}, v4"); a(f"v_cndmask_b32 v{8+r}, 0, v6, vcc")
        a("v_lshrrev_b32 v4, 4, v0"); a("v_lshlrev_b32 v4, 9, v4"); a("v_and_b32 v5, 15, v0"); a("v_lshlrev_b32 v5, 4, v5"); a("v_add_u32 v1, v4, v5")
        a("s_mov_b32 s74, s3")
        for coef, reg in zip(rot, ("s63", "s60", "s62")):
            if coef == 1: a(f"s_add_u32 s74, s74, {reg}")
            elif coef: a(f"s_mul_i32 s75, {reg}, {coef}"); a("s_add_u32 s74, s74, s75")
        a("s_and_b32 s74, s74, 15")
        a("s_lshl_b32 s75, s62, 3"); a("s_add_u32 s75, s75, s60"); a("s_lshl_b32 s75, s75, 24"); a("s_add_u32 s75, s75, 0xE00000")
        a("s_lshl_b32 s46, s63, 17"); a("s_add_u32 s75, s75, s46"); a("s_lshl_b32 s74, s74, 13"); a("s_add_u32 s44, s74, s75")
        a("s_add_u32 s45, s44, 4096")
    def late_srds():
        srd(28, sK, 0x10000000); srd(32, sV, 0x10000000); srd(56, sOUT, 1792)
    def make_tags():
        a("s_add_u32 s68, s68, 1"); a("s_addc_u32 s69, s69, 0")
        a("s_mul_i32 s96, s68, 0x7f4a7c15"); a("s_mul_hi_u32 s97, s68, 0x7f4a7c15")
        a("s_mul_i32 s75, s68, 0x9e3779b9"); a("s_add_u32 s97, s97, s75")
        a("s_mul_i32 s75, s69, 0x7f4a7c15"); a("s_add_u32 s97, s97, s75")
        a("s_and_b32 s64, s96, 0xfff"); a("s_bfe_u32 s65, s96, 0xc000c")
        a("s_lshr_b32 s66, s96, 24"); a("s_lshl_b32 s75, s97, 8"); a("s_or_b32 s66, s66, s75"); a("s_and_b32 s66, s66, 0xfff")
        a("s_bfe_u32 s67, s97, 0xc0004")
    def lds_wait_ge(addr, val, lab, sleep=0):
        a("v_mov_b32 v2, 0"); a("s_mov_b32 s97, 0")
        a.label(lab)
        a(f"ds_read_b32 v3, v2 offset:{addr}"); a("s_add_u32 s97, s97, 1"); a("s_waitcnt lgkmcnt(0)")
        a(f"v_cmp_le_u32 vcc, {val}, v3"); a(f"s_cbranch_vccnz {lab}_ok")
        if sleep: a(f"s_sleep {sleep}")
        a(f"s_cmp_gt_u32 s97, {SPIN_MAX*8}"); a(f"s_cbranch_scc0 {lab}")
        a.label(lab + "_ok")
    def lds_inc(addr):
        a("v_mov_b32 v2, 0"); a("v_mov_b32 v3, 1"); a("s_mov_b64 s[96:97], exec"); a("s_mov_b64 exec, 1")
        a(f"ds_add_u32 v2, v3 offset:{addr}")
        a("s_mov_b64 exec, s[96:97]")
    def or_tree(regs, dst):
        regs = list(regs)
        a(f"v_or3_b32 {dst}, v{regs[0]}, v{regs[1]}, v{regs[2]}"); regs = regs[3:]
        while len(regs) >= 2:
            a(f"v_or3_b32 {dst}, {dst}, v{regs[0]}, v{regs[1]}"); regs = regs[2:]
        if regs: a(f"v_or_b32 {dst}, {dst}, v{regs[0]}")
        a(f"v_and_b32 {dst}, 0xfff, {dst}"); a(f"v_cmp_ne_u32 vcc, 0, {dst}")
    def untag(base, n):
        for i in range(n):
            for k in range(4): a(f"v_xor_b32 v{base+4*i+k}, {T[k]}, v{base+4*i+k}")
    def pub_lane_addr(dst, t1, t2):
        a(f"v_lshrrev_b32 {t1}, 5, v0"); a(f"v_mul_u32_u24 {t1}, 14, {t1}"); a(f"v_bfe_u32 {t2}, v0, 2, 2"); a(f"v_add_u32 {t1}, {t1}, {t2}")
        a(f"v_mul_u32_u24 {dst}, {R2}, {t1}")
        a(f"v_and_b32 {t1}, 3, v0"); a(f"v_lshlrev_b32 {t1}, 5, {t1}"); a(f"v_bfe_u32 {t2}, v0, 4, 1"); a(f"v_lshlrev_b32 {t2}, 4, {t2}")
        a(f"v_add3_u32 {dst}, {dst}, {t1}, {t2}")
    def reduce4(base):
        for k in range(4): a(f"v_add_f32_dpp v{base+k}, v{base+k}, v{base+k} row_ror:8 {DPP}")
        a(f"v_permlane16_swap_b32 v{base}, v{base+1}"); a(f"v_permlane16_swap_b32 v{base+2}, v{base+3}")
        a(f"v_add_f32 v{base}, v{base}, v{base+1}"); a(f"v_add_f32 v{base+2}, v{base+2}, v{base+3}")
        a(f"v_permlane32_swap_b32 v{base}, v{base+2}"); a(f"v_add_f32 v{base}, v{base}, v{base+2}")
    def col_addr(dst, t1):
        a(f"v_and_b32 {dst}, 7, v0"); a(f"v_lshlrev_b32 {dst}, 4, {dst}"); a(f"v_lshrrev_b32 {t1}, 5, v0"); a(f"v_lshlrev_b32 {t1}, 3, {t1}"); a(f"v_add_u32 {dst}, {dst}, {t1}")
        a(f"v_bfe_u32 {t1}, v0, 4, 1"); a(f"v_lshlrev_b32 {t1}, 2, {t1}"); a(f"v_add_u32 {dst}, {dst}, {t1}")

    a("s_cmp_ge_u32 s2, 256"); a("s_cbranch_scc1 L_end")
    if perm:
        a("s_mul_i32 s2, s2, 37"); a("s_add_u32 s2, s2, 11"); a("s_and_b32 s2, s2, 255")
    a("s_load_dwordx16 s[4:19], s[0:1], 0")
    a("s_load_dwordx8 s[20:27], s[0:1], 64")
    stamp(0)
    a("v_lshrrev_b32 v1, 6, v0"); a("v_and_b32 v0, 63, v0")
    a("v_lshlrev_b32 v2, 1, v0"); a("v_mov_b32 v3, 0")
    a("v_readfirstlane_b32 s3, v1")
    a("v_and_b32 v2, 0x7c, v2")
    a("ds_write_b32 v2, v3")
    a("s_cmp_lt_u32 s3, 2"); a("s_cbranch_scc0 L_dpro")

    a("s_setprio 3")
    ids()
    a("s_cmp_eq_u32 s3, 0"); a("s_cbranch_scc0 L_ctrl1")
    a("s_lshr_b32 s74, s61, 3"); a("s_and_b32 s75, s61, 7")
    a(f"s_mul_i32 s96, s74, {112*8192}"); a("s_lshl_b32 s97, s60, 10"); a("s_add_u32 s96, s96, s97"); a("s_lshl_b32 s97, s75, 7"); a("s_add_u32 s96, s96, s97")
    a("s_lshl_b32 s98, s60, 3"); a("s_add_u32 s98, s98, s74"); a("s_lshl_b32 s98, s98, 11")
    a("s_lshl_b32 s99, s75, 8"); a("s_add_u32 s98, s98, s99"); a(f"s_add_u32 s98, s98, {QP}")
    a("s_mov_b32 s99, 8192"); a("s_mov_b32 s97, 8192"); a(f"s_mov_b32 s42, {448*8192:#x}")
    a("s_waitcnt lgkmcnt(0)")
    a("s_mov_b32 s40, s10"); a("s_mov_b32 s41, s11")
    a("s_branch L_tile")
    a.label("L_ctrl1")
    a("s_lshr_b32 s47, s2, 1"); a("s_and_b32 s75, s2, 1"); a("s_lshl_b32 s75, s75, 7"); a("s_add_u32 s47, s47, s75")
    a("s_cmp_lt_u32 s47, 224"); a("s_cbranch_scc0 L_notile")
    a("s_lshr_b32 s75, s47, 1"); a("s_mul_i32 s74, s75, 4682"); a("s_lshr_b32 s74, s74, 17")
    a("s_mul_i32 s96, s74, 28"); a("s_sub_u32 s75, s75, s96")
    a(f"s_mul_i32 s96, s74, {112*3584}"); a("s_lshl_b32 s97, s75, 7"); a("s_add_u32 s96, s96, s97")
    a("s_and_b32 s99, s47, 1")
    a("s_lshl_b32 s98, s99, 2"); a("s_add_u32 s98, s98, s74"); a("s_mul_i32 s98, s98, 14336")
    a("s_lshl_b32 s97, s75, 8"); a("s_add_u32 s98, s98, s97"); a(f"s_add_u32 s98, s98, {FP}")
    a(f"s_mov_b32 s42, {448*3584:#x}")
    a("s_cmp_eq_u32 s99, 0")
    a("s_waitcnt lgkmcnt(0)")
    a("s_cselect_b32 s40, s16, s18"); a("s_cselect_b32 s41, s17, s19")
    a("s_mov_b32 s97, 3584"); a("s_mov_b32 s99, 7168")
    a.label("L_tile")
    a("s_mov_b32 s43, 0x20000")
    srd(52, sX, 1792)
    TR = 40
    a("v_lshrrev_b32 v4, 3, v0"); a("v_mul_lo_u32 v4, s97, v4"); a("v_and_b32 v5, 7, v0"); a("v_lshlrev_b32 v5, 4, v5"); a("v_add_u32 v4, v4, v5")
    a("v_and_b32 v6, 31, v0"); a("v_lshrrev_b32 v7, 5, v0"); a("v_mul_u32_u24 v7, 896, v7"); a("v_lshlrev_b32 v5, 5, v6"); a("v_add_u32 v5, v5, v7")
    a("v_cmp_gt_u32 vcc, 28, v6"); a("v_mov_b32 v7, 0x10000"); a("v_cndmask_b32 v5, v7, v5, vcc")
    a(f"buffer_load_dwordx4 v[20:23], v5, {XS}, 0 offen"); a(f"buffer_load_dwordx4 v[24:27], v5, {XS}, 0 offen offset:16")
    a("s_mul_i32 s75, s74, 224"); a("v_lshlrev_b32 v6, 2, v0"); a("v_cmp_gt_u32 vcc, 56, v0"); a("v_cndmask_b32 v6, v7, v6, vcc")
    a(f"buffer_load_dword v28, v6, {XS}, s75 offen"); a(f"buffer_load_dword v29, v6, {XS}, s75 offen offset:896")
    a("s_lshl_b32 s97, s97, 3")
    for t in range(14):
        a(f"buffer_load_dwordx4 v[{TR+4*t}:{TR+4*t+3}], v4, {TILE}, s96 offen {wflag}")
        if t < 13: a("s_add_u32 s96, s96, s97")
    a("s_load_dwordx2 s[68:69], s[26:27], 0")
    a("s_barrier")
    stamp(9)
    srd(36, sWSp, WS_BYTES)
    late_srds()
    lane_consts()
    a("s_waitcnt lgkmcnt(0)")
    make_tags()
    a("s_mov_b32 s74, 0x3f803f80")
    a("s_waitcnt vmcnt(16)")
    a("v_dot2_f32_bf16 v30, v20, s74, 0"); a("v_dot2_f32_bf16 v31, v20, v20, 0")
    for j in range(1, 8):
        a(f"v_dot2c_f32_bf16 v30, s74, v{20+j}"); a(f"v_dot2c_f32_bf16 v31, v{20+j}, v{20+j}")
    for m in ("row_ror:8", "row_ror:4", "row_ror:2", "row_ror:1"):
        a(f"v_add_f32_dpp v30, v30, v30 {m} {DPP}"); a(f"v_add_f32_dpp v31, v31, v31 {m} {DPP}")
    a("v_mov_b32 v32, v30"); a("v_mov_b32 v33, v31")
    a("v_permlane16_swap_b32 v30, v32"); a("v_permlane16_swap_b32 v31, v33")
    a("v_add_f32 v30, v30, v32"); a("v_add_f32 v31, v31, v33")
    a("v_mul_f32 v30, 0x3b124925, v30")
    a("v_mul_f32 v31, 0x3b124925, v31")
    a("v_fma_f32 v31, -v30, v30, v31"); a("v_max_f32 v31, 0, v31")
    a("v_cvt_pk_bf16_f32 v31, v31, v30")
    a("v_and_b32 v30, 0xffff0000, v31")
    a("v_lshlrev_b32 v31, 16, v31")
    a("v_add_f32 v31, 0x3727c5ac, v31"); a("v_cvt_pk_bf16_f32 v31, v31, v31"); a("v_and_b32 v31, 0xffff0000, v31")
    a("v_sqrt_f32 v31, v31"); a("v_cvt_pk_bf16_f32 v31, v31, v31"); a("v_and_b32 v31, 0xffff0000, v31")
    a("v_rcp_f32 v31, v31")
    a("v_readlane_b32 s74, v30, 0"); a("v_readlane_b32 s75, v30, 32"); a("v_readlane_b32 s96, v31, 0"); a("v_readlane_b32 s97, v31, 32")
    a("s_waitcnt vmcnt(14)")
    for b in range(2):
        a(f"v_lshlrev_b32 v{96+2*b}, 16, v{28+b}"); a(f"v_and_b32 v{97+2*b}, 0xffff0000, v{28+b}")
    for b in range(2):
        a(f"v_subrev_f32 v{96+2*b}, s{74+b}, v{96+2*b}"); a(f"v_subrev_f32 v{97+2*b}, s{74+b}, v{97+2*b}")
    for b in range(2): a(f"v_cvt_pk_bf16_f32 v{100+b}, v{96+2*b}, v{97+2*b}")
    for b in range(2):
        a(f"v_lshlrev_b32 v{96+2*b}, 16, v{100+b}"); a(f"v_and_b32 v{97+2*b}, 0xffff0000, v{100+b}")
    for b in range(2):
        a(f"v_mul_f32 v{96+2*b}, s{96+b}, v{96+2*b}"); a(f"v_mul_f32 v{97+2*b}, s{96+b}, v{97+2*b}")
    for j in range(4): a(f"v_cvt_pk_bf16_f32 v{96+j}, v{96+j}, v{96+j}")
    a("s_mul_i32 s74, s3, 896"); a("v_lshlrev_b32 v6, 3, v0"); a("v_add_u32 v6, s74, v6")
    a("v_cmp_gt_u32 vcc, 56, v0"); a("s_and_saveexec_b64 s[96:97], vcc")
    a(f"ds_write_b64 v6, v[96:97] offset:{L_XD}"); a(f"ds_write_b64 v6, v[98:99] offset:{L_XD+448}")
    a("s_mov_b64 exec, s[96:97]")
    a("v_lshrrev_b32 v6, 3, v0"); a("v_lshlrev_b32 v6, 2, v6"); a("v_add_u32 v6, s74, v6")
    a("s_waitcnt lgkmcnt(0)")
    XV = 96
    for t in range(7):
        for b in range(2): a(f"ds_read_b32 v{XV+2*t+b}, v6 offset:{L_XD + b*448 + t*32}")
    a("v_lshrrev_b32 v4, 5, v0"); a("v_mul_lo_u32 v4, s99, v4"); a("v_and_b32 v5, 7, v0"); a("v_lshlrev_b32 v5, 5, v5"); a("v_bfe_u32 v7, v0, 4, 1"); a("v_lshlrev_b32 v7, 4, v7")
    a("v_add3_u32 v4, v4, v5, v7")
    a("s_waitcnt lgkmcnt(0)")
    for t in range(7, 14):
        for b in range(2): a(f"ds_read_b32 v{XV+2*t+b}, v6 offset:{L_XD + b*448 + t*32}")
    for t in range(14):
        A0 = 20 + 8 * (t & 1)
        if t == 7: a("s_waitcnt lgkmcnt(0)")
        for b in range(2):
            for r in range(4): a(f"v_and_b32 v{A0+4*b+r}, v{XV+2*t+b}, v{8+r}")
        a(f"s_waitcnt vmcnt({13-t})")
        for b in range(2):
            d = 12 + 4 * b
            c = "0" if t == 0 else f"v[{d}:{d+3}]"
            a(f"v_mfma_f32_16x16x32_bf16 v[{d}:{d+3}], v[{A0+4*b}:{A0+4*b+3}], v[{TR+4*t}:{TR+4*t+3}], {c}")
    a("v_mov_b32 v33, 0xfffff000")
    a("v_bfe_u32 v5, v0, 3, 1"); a("v_lshrrev_b32 v7, 5, v0"); a("v_cmp_eq_u32 vcc, v5, v7")
    for k in range(4):
        a(f"v_mov_b32_dpp v{20+k}, v{12+k} row_ror:8 {DPP}"); a(f"v_mov_b32_dpp v{24+k}, v{16+k} row_ror:8 {DPP}")
    for k in range(4): a(f"v_permlane32_swap_b32 v{20+k}, v{24+k}")
    for k in range(4):
        a(f"v_cndmask_b32 v{28+k}, v{16+k}, v{12+k}, {mLO}"); a(f"v_cndmask_b32 v{20+k}, v{20+k}, v{24+k}, {mLO}")
    for k in range(4): a(f"v_add_f32 v{28+k}, v{28+k}, v{20+k}")
    for k in range(4): a(f"v_and_or_b32 v{28+k}, v{28+k}, v33, {T[k]}")
    a("s_and_saveexec_b64 s[96:97], vcc")
    a(f"buffer_store_dwordx4 v[28:31], v4, {WS}, s98 offen sc1")
    a("s_mov_b64 exec, s[96:97]")
    a("s_cmp_eq_u32 s3, 0"); a("s_cbranch_scc1 L_qg")
    stamp(10)
    a("s_setprio 0")
    a("s_branch L_kv")
    a.label("L_qg")
    a("s_getreg_b32 s46, hwreg(HW_REG_XCC_ID)"); a("s_and_b32 s46, s46, 15")
    a("s_lshl_b32 s47, s65, 12"); a("s_or_b32 s47, s47, s64")
    a("s_lshl_b32 s96, s46, 24"); a("s_or_b32 s96, s96, s47")
    a("s_lshl_b32 s97, s60, 7"); a("s_lshl_b32 s75, s61, 2"); a("s_add_u32 s75, s75, s97"); a(f"s_add_u32 s75, s75, {XID}")
    a("v_mov_b32 v5, s96"); a("v_mov_b32 v7, 0"); a("s_mov_b64 s[98:99], exec"); a("s_mov_b64 exec, 1")
    a(f"buffer_store_dword v5, v7, {WS}, s75 offen sc1")
    a("s_mov_b64 exec, s[98:99]")
    stamp(10)
    a("s_lshl_b32 s74, s60, 1"); a("s_add_u32 s74, s74, s62"); a("s_lshl_b32 s74, s74, 13"); a(f"s_add_u32 s74, s74, {QP}"); a("s_add_u32 s75, s74, 4096")
    a("v_lshlrev_b32 v4, 4, v0"); a("s_mov_b32 s98, 0")
    QG = [100 + 4 * i for i in range(7)] + [20]
    a("v_and_b32 v5, 31, v0"); a("v_lshlrev_b32 v5, 2, v5"); a(f"s_add_u32 s96, s97, {XID}")
    if qdelay: a(f"s_sleep {qdelay}")
    a.label("L_qpoll")
    for i in range(8):
        so = "s74" if i < 4 else "s75"
        a(f"buffer_load_dwordx4 v[{QG[i]}:{QG[i]+3}], v4, {WS}, {so} offen offset:{1024*(i&3)} sc1")
    a(f"buffer_load_dword v28, v5, {WS}, s96 offen sc1")
    a("s_add_u32 s98, s98, 1"); a("s_waitcnt vmcnt(0)")
    for i in range(8):
        for k in range(4): a(f"v_xor_b32 v{QG[i]+k}, {T[k]}, v{QG[i]+k}")
    a("v_xor_b32 v29, s47, v28"); a("v_and_b32 v29, 0xffffff, v29"); a("v_min_u32 v29, 1, v29")
    or_tree([QG[i] + k for i in range(8) for k in range(4)] + [29], "v16")
    a("s_cbranch_vccz L_qgot")
    if retry_sleep: a(f"s_sleep {retry_sleep}")
    a(f"s_cmp_gt_u32 s98, {SPIN_MAX}"); a("s_cbranch_scc0 L_qpoll")
    a.label("L_qgot")
    for h in range(2):
        for k in range(4):
            a(f"v_add_f32 v{QG[h]+k}, v{QG[h]+k}, v{QG[2+h]+k}"); a(f"v_add_f32 v{QG[4+h]+k}, v{QG[4+h]+k}, v{QG[6+h]+k}")
    for h in range(2):
        for k in range(4): a(f"v_add_f32 v{QG[h]+k}, v{QG[h]+k}, v{QG[4+h]+k}")
    for h in range(2):
        a(f"v_cvt_pk_bf16_f32 v{24+2*h}, v{QG[h]}, v{QG[h]+1}"); a(f"v_cvt_pk_bf16_f32 v{25+2*h}, v{QG[h]+2}, v{QG[h]+3}")
    a("v_lshlrev_b32 v4, 3, v0")
    a(f"ds_write_b64 v4, v[24:25] offset:{L_Q}"); a(f"ds_write_b64 v4, v[26:27] offset:{L_Q+512}")
    a("v_lshrrev_b32 v28, 24, v28"); a("v_cmp_ne_u32 vcc, s46, v28"); a("s_cmp_eq_u64 vcc, 0"); a("s_cselect_b32 s96, 2, 1")
    a("s_waitcnt lgkmcnt(0)")
    a("v_mov_b32 v4, 0"); a("v_mov_b32 v5, s96")
    a(f"ds_write_b32 v4, v5 offset:{L_FLAG}")
    stamp(11)
    a("s_setprio 0")
    a("s_branch L_kv")
    a.label("L_notile")
    a("s_waitcnt lgkmcnt(0)")
    a("s_load_dwordx2 s[68:69], s[26:27], 0")
    a("s_barrier")
    srd(36, sWSp, WS_BYTES); srd(52, sX, 1792)
    late_srds()
    lane_consts()
    a("s_waitcnt lgkmcnt(0)")
    make_tags()
    a("s_setprio 0")
    a("s_branch L_kv")

    a.label("L_dpro")
    ids()
    lane_consts()
    for n, size in ((28, 0x10000000), (32, 0x10000000), (36, WS_BYTES), (52, 1792), (56, 1792)):
        a(f"s_mov_b32 s{n+2}, {size:#x}"); a(f"s_mov_b32 s{n+3}, 0x20000")
    a("s_waitcnt lgkmcnt(0)")
    for n, ptr in ((28, sK), (32, sV), (36, sWSp), (52, sX), (56, sOUT)):
        a(f"s_mov_b32 s{n}, s{ptr}"); a(f"s_mov_b32 s{n+1}, s{ptr+1}")
    a("s_load_dwordx2 s[68:69], s[26:27], 0")
    a("s_barrier")
    if codepf:
        a("s_cmp_eq_u32 s3, 15"); a("s_cbranch_scc0 L_nopf")
        a("s_getpc_b64 s[96:97]")
        a.label("L_pc")
        a(f"s_sub_u32 s96, s96, L_pc-{KNAME}"); a("s_subb_u32 s97, s97, 0")
        a("s_lshr_b32 s74, s2, 3"); a("s_mul_i32 s74, s74, 384"); a("v_lshlrev_b32 v4, 6, v0"); a("v_add_u32 v4, s74, v4")
        a("v_cmp_gt_u32 s[74:75], 6, v0"); a(f"v_cmp_gt_u32 vcc, L_codeend-{KNAME}, v4"); a("s_and_b64 vcc, vcc, s[74:75]")
        a("s_and_saveexec_b64 s[74:75], vcc")
        a("s_cbranch_execz L_pfskip")
        a("global_load_dword v36, v4, s[96:97]")
        a.label("L_pfskip")
        a("s_mov_b64 exec, s[74:75]")
        a.label("L_nopf")

    if tlbwarm:
        a("s_cmp_eq_u32 s3, 14"); a("s_cbranch_scc0 L_notlb")
        a("v_cmp_gt_u32 vcc, 28, v0"); a(f"v_mul_u32_u24 v4, {R2}, v0"); a("v_mov_b32 v5, 0"); a("v_cndmask_b32 v4, v5, v4, vcc")
        a(f"s_mov_b32 s74, {P2 + 32768}"); a(f"buffer_load_dword v36, v4, {WS}, s74 offen")
        a(f"s_mov_b32 s74, {YP + 32768}"); a(f"buffer_load_dword v37, v4, {WS}, s74 offen")
        a("v_and_b32 v4, 31, v0"); a(f"v_mul_u32_u24 v4, {R1}, v4"); a("s_lshl_b32 s74, s60, 5"); a(f"s_mul_i32 s74, s74, {R1}"); a(f"s_add_u32 s74, s74, {P1 + 4096}")
        a(f"buffer_load_dword v38, v4, {WS}, s74 offen")
        a.label("L_notlb")

    a.label("L_kv")
    loads = []
    for (base, srdn) in ((KR, K), (VR, V)):
        for t in range(4):
            for h in range(2):
                so = "s44" if t < 2 else "s45"
                imm = (t & 1) * 2048 + h * 256
                r = base + (t * 2 + h) * 4
                loads.append(f"buffer_load_dwordx4 v[{r}:{r+3}], v1, {srdn}, {so} offen offset:{imm} {kvflag}")
    a("s_cmp_lt_u32 s3, 12"); a("s_cbranch_scc1 L_nowo0")
    a("s_lshl_b32 s46, s60, 9"); a("s_lshl_b32 s97, s61, 4"); a("s_add_u32 s46, s46, s97"); a("s_mul_i32 s46, s46, 896")
    a("s_sub_u32 s97, s3, 12"); a("s_lshl_b32 s97, s97, 8"); a("s_add_u32 s46, s46, s97")
    a("v_lshrrev_b32 v4, 4, v0"); a("v_mul_u32_u24 v4, 3584, v4"); a("v_and_b32 v5, 15, v0"); a("v_lshlrev_b32 v5, 4, v5"); a("v_add_u32 v2, v4, v5")
    a.label("L_nowo0")
    a("s_and_b32 s97, s3, 0xb"); a("s_cmp_eq_u32 s97, 2"); a("s_cbranch_scc1 L_tok"); a("s_cmp_eq_u32 s97, 3"); a("s_cbranch_scc1 L_tok")
    a("s_lshl_b32 s97, s3, 2"); a("v_mov_b32 v6, s97"); a("s_mov_b32 s98, 0")
    a.label("L_tokw")
    a(f"ds_read_b32 v7, v6 offset:{L_TOK}"); a("s_add_u32 s98, s98, 1"); a("s_waitcnt lgkmcnt(0)")
    a("v_cmp_ne_u32 vcc, 0, v7"); a("s_cbranch_vccnz L_tok")
    a(f"s_cmp_gt_u32 s98, {SPIN_MAX*8}"); a("s_cbranch_scc1 L_tok")
    a("s_sleep 1"); a("s_branch L_tokw")
    a.label("L_tok")
    a("s_cmp_lt_u32 s3, 12"); a("s_cbranch_scc0 L_last")
    if Deven is not None:
        a("s_bitcmp1_b32 s2, 0"); a("s_cbranch_scc1 L_isodd")
        for n, ld in enumerate(loads):
            if n >= Deven: a(f"s_waitcnt vmcnt({Deven-1})")
            a(ld)
        a(f"s_waitcnt vmcnt({RELeven if RELeven is not None else REL})")
        a("s_branch L_rel2")
        a.label("L_isodd")
    for n, ld in enumerate(loads):
        if n >= D: a(f"s_waitcnt vmcnt({D-1})")
        a(ld)
    a("s_branch L_rel")
    a.label("L_last")
    srd(40, sWO, 4096 * 896)
    if Dlast_even is not None:
        a("s_bitcmp1_b32 s2, 0"); a("s_cbranch_scc1 L_lastodd")
        for n, ld in enumerate(loads):
            if Dlast_even and n >= Dlast_even: a(f"s_waitcnt vmcnt({Dlast_even-1})")
            a(ld)
        a("s_branch L_lastwo")
        a.label("L_lastodd")
    for n, ld in enumerate(loads):
        if Dlast and n >= Dlast: a(f"s_waitcnt vmcnt({Dlast-1})")
        a(ld)
    if Dlast_even is not None: a.label("L_lastwo")
    for t in range(4):
        a(f"buffer_load_dwordx4 v[{WOR+4*t}:{WOR+4*t+3}], v2, s[40:43], s46 offen offset:{t*896} {wflag}")
    a("s_branch L_nowo")
    a.label("L_rel")
    a(f"s_waitcnt vmcnt({REL})")
    if Deven is not None: a.label("L_rel2")
    if not dynq:
        nxt = {2:4, 4:0, 0:12, 3:5, 5:1, 1:13, 6:10, 10:8, 8:14, 7:11, 11:9, 9:15}
        tab = sum(v << (4 * k) for k, v in nxt.items())
        a(f"s_mov_b32 s74, {tab & 0xffffffff:#x}"); a(f"s_mov_b32 s75, {tab >> 32:#x}"); a("s_lshl_b32 s97, s3, 2"); a("s_lshr_b64 s[74:75], s[74:75], s97")
        a("s_and_b32 s97, s74, 15"); a("s_lshl_b32 s97, s97, 2"); a("v_mov_b32 v6, s97"); a("v_mov_b32 v7, 1")
        a(f"ds_write_b32 v6, v7 offset:{L_TOK}")
    else:
        tab = sum(v << (4 * k) for k, v in enumerate(order))
        a("v_mov_b32 v6, 0"); a("v_mov_b32 v7, 1"); a("s_mov_b64 s[96:97], exec"); a("s_mov_b64 exec, 1")
        a(f"ds_add_rtn_u32 v2, v6, v7 offset:{L_NEXT}")
        a(f"s_mov_b32 s74, {tab & 0xffffffff:#x}"); a(f"s_mov_b32 s75, {tab >> 32:#x}")
        a("s_waitcnt lgkmcnt(0)")
        a("v_readfirstlane_b32 s98, v2")
        a("s_lshl_b32 s98, s98, 2"); a("s_lshr_b64 s[74:75], s[74:75], s98"); a("s_and_b32 s98, s74, 15"); a("s_lshl_b32 s98, s98, 2"); a("v_mov_b32 v6, s98")
        a(f"ds_write_b32 v6, v7 offset:{L_TOK}")
        a("s_mov_b64 exec, s[96:97]")
    a.label("L_nowo")
    a("s_cmp_lt_u32 s3, 2"); a("s_cbranch_scc1 L_havetags")
    a("s_waitcnt lgkmcnt(0)")
    make_tags()
    a.label("L_havetags")
    stamp(1)
    a("v_mov_b32 v2, 0"); a("s_mov_b32 s97, 0")
    a.label("L_qwait")
    a(f"ds_read_b32 v3, v2 offset:{L_FLAG}"); a("s_add_u32 s97, s97, 1"); a("s_waitcnt lgkmcnt(0)")
    a("v_cmp_ne_u32 vcc, 0, v3"); a("s_cbranch_vccnz L_qok")
    a(f"s_cmp_gt_u32 s97, {SPIN_MAX*8}"); a("s_cbranch_scc1 L_qok")
    a(f"s_sleep {qsleep}"); a("s_branch L_qwait")
    a.label("L_qok")
    a("v_readfirstlane_b32 s100, v3")
    a("v_and_b32 v4, 15, v0"); a("v_lshlrev_b32 v4, 4, v4")
    for h in range(2):
        for hf in range(2):
            r = QF + (h * 2 + hf) * 4
            a(f"ds_read_b128 v[{r}:{r+3}], v4 offset:{L_Q + h*512 + hf*256}")
    stamp(2)
    a("v_lshrrev_b32 v5, 5, v0"); a("v_lshlrev_b32 v5, 10, v5"); a("v_and_b32 v6, 15, v0"); a("v_lshlrev_b32 v6, 5, v6")
    a("v_bfe_u32 v7, v0, 4, 1"); a("v_lshlrev_b32 v7, 4, v7"); a("v_add3_u32 v5, v5, v6, v7")
    a(f"s_mul_i32 s96, s3, {OLS}"); a("v_add_u32 v5, s96, v5")
    a("v_and_b32 v6, 8, v0"); a("s_lshl_b32 s96, s3, 4"); a("v_add_u32 v6, s96, v6")
    a("v_and_b32 v7, 0x37, v0"); a("v_cmp_eq_u32 s[46:47], 0, v7")
    ACC = 116
    a("s_cmp_lt_u32 s3, 12"); a("s_cbranch_scc1 L_kw0"); a("s_waitcnt vmcnt(12) lgkmcnt(0)"); a("s_branch L_kw1")
    a.label("L_kw0"); a("s_waitcnt vmcnt(8) lgkmcnt(0)"); a.label("L_kw1")
    for t in range(4):
        for hf in range(2):
            for r in range(4):
                for h in range(2):
                    kreg = KR + (t * 2 + hf) * 4 + r
                    qreg = QF + (h * 2 + hf) * 4 + r
                    acc = ACC + 2 * t + h
                    if hf == 0 and r == 0: a(f"v_dot2_f32_bf16 v{acc}, v{kreg}, v{qreg}, 0")
                    else: a(f"v_dot2c_f32_bf16 v{acc}, v{kreg}, v{qreg}")
    U, W = 124, KR
    for t in range(4): a(f"v_cndmask_b32 v{U+t}, v{ACC+2*t}, v{ACC+2*t+1}, {mB3}")
    for t in range(4): a(f"v_cndmask_b32 v{W+t}, v{ACC+2*t+1}, v{ACC+2*t}, {mB3}")
    for t in range(4): a(f"v_add_f32_dpp v{U+t}, v{W+t}, v{U+t} row_ror:8 {DPP}")
    for m in ("quad_perm:[1,0,3,2]", "quad_perm:[2,3,0,1]", "row_half_mirror"):
        for t in range(4): a(f"v_add_f32_dpp v{U+t}, v{U+t}, v{U+t} {m} {DPP}")
    for t in range(4): a(f"v_cvt_pk_bf16_f32 v{U+t}, v{U+t}, v{U+t}")
    for t in range(4): a(f"v_and_b32 v{U+t}, 0xffff0000, v{U+t}")
    MX, TMP = 116, 117
    a(f"v_max3_f32 v{MX}, v{U}, v{U+1}, v{U+2}"); a(f"v_max_f32 v{MX}, v{MX}, v{U+3}")
    a(f"v_mov_b32 v{TMP}, v{MX}"); a(f"v_permlane16_swap_b32 v{MX}, v{TMP}"); a(f"v_max_f32 v{MX}, v{MX}, v{TMP}")
    a(f"v_mov_b32 v{TMP}, v{MX}"); a(f"v_permlane32_swap_b32 v{MX}, v{TMP}"); a(f"v_max_f32 v{MX}, v{MX}, v{TMP}")
    a("s_mov_b32 s96, 0x3db8aa3b")
    for t in range(4): a(f"v_sub_f32 v{U+t}, v{U+t}, v{MX}")
    for t in range(4): a(f"v_mul_f32 v{U+t}, s96, v{U+t}")
    for t in range(4): a(f"v_exp_f32 v{U+t}, v{U+t}")
    AO = KR + 4
    for t in range(4): a(f"v_cvt_pk_bf16_f32 v{W+t}, v{U+t}, v{U+t}")
    LS = 117; T2 = 118
    a(f"v_add_f32 v{LS}, v{U}, v{U+1}"); a(f"v_add_f32 v{T2}, v{U+2}, v{U+3}")
    for t in range(4):
        for r in range(4): a(f"v_and_b32 v{AO+4*t+r}, v{W+t}, v{8+r}")
        if t == 0: a(f"v_add_f32 v{LS}, v{LS}, v{T2}")
        if t == 1: a(f"v_mov_b32 v{T2}, v{LS}")
        if t == 2: a(f"v_permlane16_swap_b32 v{LS}, v{T2}"); a(f"v_add_f32 v{LS}, v{LS}, v{T2}")
        if t == 3: a(f"v_mov_b32 v{T2}, v{LS}")
    a(f"v_permlane32_swap_b32 v{LS}, v{T2}"); a(f"v_add_f32 v{LS}, v{LS}, v{T2}")
    a("s_mov_b64 s[74:75], exec"); a("s_mov_b64 exec, s[46:47]")
    a(f"ds_write_b64 v6, v[{MX}:{LS}] offset:{L_ST}")
    a("s_mov_b64 exec, s[74:75]")
    for t in range(4):
        a(f"s_waitcnt vmcnt({12 - 2*(t+1)})")
        a("s_cmp_lt_u32 s3, 12"); a(f"s_cbranch_scc0 L_vw{t}")
        a(f"s_waitcnt vmcnt({8 - 2*(t+1)})")
        a.label(f"L_vw{t}")
        for hf in range(2):
            vr = VR + (t * 2 + hf) * 4
            d = 12 + 4 * hf
            c = "0" if t == 0 else f"v[{d}:{d+3}]"
            a(f"v_mfma_f32_16x16x32_bf16 v[{d}:{d+3}], v[{AO+4*t}:{AO+4*t+3}], v[{vr}:{vr+3}], {c}")
    a(f"ds_write_b128 v5, v[12:15] offset:{L_OL}")
    a(f"ds_write_b128 v5, v[16:19] offset:{L_OL + 512}")
    stamp(3)
    a(f"s_cmp_eq_u32 s3, {fw}"); a("s_cbranch_scc0 L_ffn2_done"); a("s_cmp_lt_u32 s2, 224"); a("s_cbranch_scc0 L_ffn2_done")
    a("s_and_b32 s74, s2, 1"); a("s_cmp_eq_u32 s74, 0"); a("s_cbranch_scc1 L_ffn2")
    a.label("L_ffn2_done")
    a("s_sub_u32 s74, s3, 4"); a("s_cmp_lt_u32 s74, 4"); a("s_cbranch_scc0 L_bar2")
    a("v_and_b32 v4, 31, v0"); a("v_lshlrev_b32 v5, 4, v4"); a("v_lshrrev_b32 v6, 5, v0"); a(f"v_mul_u32_u24 v7, {8*OLS}, v6"); a("v_add_u32 v5, v5, v7")
    a("s_lshr_b32 s75, s74, 1"); a("s_lshl_b32 s96, s75, 10"); a("s_and_b32 s97, s74, 1"); a("s_lshl_b32 s97, s97, 9"); a("s_add_u32 s96, s96, s97"); a("v_add_u32 v5, s96, v5")
    a("v_lshlrev_b32 v7, 3, v6"); a("v_add_u32 v7, v7, v0"); a("v_and_b32 v7, 15, v7"); a("v_lshlrev_b32 v7, 4, v7"); a("s_lshl_b32 s96, s75, 3")
    a("v_lshlrev_b32 v3, 6, v6")
    a("v_add_u32 v6, s96, v7")
    a("v_lshrrev_b32 v7, 2, v4"); a(f"v_mul_u32_u24 v7, {R1}, v7"); a("v_and_b32 v4, 3, v0"); a("v_lshlrev_b32 v4, 4, v4"); a("v_add3_u32 v7, v7, v4, v3")
    a("s_lshl_b32 s75, s60, 5"); a("s_lshl_b32 s96, s74, 3"); a("s_add_u32 s75, s75, s96"); a(f"s_mul_i32 s75, s75, {R1}")
    a("s_lshr_b32 s96, s63, 2"); a("s_lshl_b32 s96, s96, 3"); a("s_lshl_b32 s97, s62, 2"); a("s_add_u32 s96, s96, s97"); a("s_and_b32 s97, s63, 3"); a("s_add_u32 s96, s96, s97")
    a("s_lshl_b32 s96, s96, 7"); a("s_add_u32 s75, s75, s96"); a(f"s_add_u32 s75, s75, {P1}")
    a("v_mov_b32 v33, 0xfffff000"); a("s_mov_b32 s96, 0x3db8aa3b")
    a("s_setprio 3")
    a.label("L_bar2")
    a("s_waitcnt lgkmcnt(0)")
    a("s_barrier")
    stamp(4)
    a("s_cmp_lt_u32 s74, 4"); a("s_cbranch_scc0 L_notcomb")
    a(f"ds_read_b64 v[28:29], v6 offset:{L_ST}")
    OR = 36
    for j8 in range(8): a(f"ds_read_b128 v[{OR+4*j8}:{OR+4*j8+3}], v5 offset:{L_OL + j8*OLS}")
    a("s_waitcnt lgkmcnt(8)")
    a("v_mov_b32 v34, v28")
    for m in ("row_ror:8", "row_ror:4", "row_ror:2", "row_ror:1"):
        a(f"v_max_f32_dpp v34, v34, v34 {m} {DPP}")
    a("v_sub_f32 v35, v28, v34"); a("v_mul_f32 v35, s96, v35"); a("v_exp_f32 v35, v35")
    a("v_mul_f32 v29, v35, v29")
    rors = ["row_ror:8", "row_ror:4", "row_ror:2", "row_ror:1"]
    for j8 in range(8):
        a(f"s_waitcnt lgkmcnt({7-j8})")
        for k in range(4):
            op = "v_mul_f32_dpp" if j8 == 0 else "v_fmac_f32_dpp"
            a(f"{op} v{20+k}, v35, v{OR+4*j8+k} row_newbcast:{j8} {DPP}")
        if j8 < 4: a(f"v_add_f32_dpp v29, v29, v29 {rors[j8]} {DPP}")
    for k in range(4): a(f"v_mov_b32 v{24+k}, v{20+k}")
    for k in range(4): a(f"v_permlane32_swap_b32 v{20+k}, v{24+k}")
    for k in range(4): a(f"v_add_f32 v{20+k}, v{20+k}, v{24+k}")
    a(f"v_cndmask_b32 v20, v34, v20, {mLO}"); a(f"v_cndmask_b32 v21, v29, v21, {mLO}"); a(f"v_cndmask_b32 v22, v34, v22, {mLO}"); a(f"v_cndmask_b32 v23, v29, v23, {mLO}")
    for k in range(4): a(f"v_and_or_b32 v{20+k}, v{20+k}, v33, {T[k]}")
    a("s_cmp_eq_u32 s100, 2"); a("s_cbranch_scc1 L_p1fast")
    a(f"buffer_store_dwordx4 v[20:23], v7, {WS}, s75 offen sc1")
    a("s_branch L_p1pub")
    a.label("L_p1fast")
    a(f"buffer_store_dwordx4 v[20:23], v7, {WS}, s75 offen")
    a.label("L_p1pub")
    lds_inc(L_PUBCNT)
    a("s_setprio 0")
    stamp(5)
    a("s_branch L_aux_done")
    a.label("L_notcomb")
    a("s_cmp_lt_u32 s3, 12"); a("s_cbranch_scc1 L_aux")

    a("s_setprio 3")
    GR = 36
    a("s_lshl_b32 s74, s60, 5"); a("s_add_u32 s74, s74, s61"); a(f"s_mul_i32 s74, s74, {R1}"); a(f"s_add_u32 s74, s74, {P1}")
    a("v_lshlrev_b32 v4, 4, v0")
    a("s_mov_b32 s98, 0")
    a("s_cmp_eq_u32 s100, 2"); a("s_cbranch_scc1 L_p1df")
    lds_wait_ge(L_PUBCNT, 4, "L_pubw")
    if p1delay: a(f"s_sleep {p1delay}")
    a.label("L_p1df")
    stamp(11)
    def p1ld():
        for i in range(4): a(f"buffer_load_dwordx4 v[{GR+4*i}:{GR+4*i+3}], v4, {WS}, s74 offen offset:{1024*i} sc1")
    p1ld()
    pub_lane_addr("v5", "v6", "v7")
    a("s_sub_u32 s75, s3, 12"); a(f"s_mul_i32 s99, s75, {4*R2}"); a("s_lshl_b32 s97, s60, 5"); a("s_add_u32 s97, s97, s61"); a("s_lshl_b32 s97, s97, 7"); a("s_add_u32 s99, s99, s97"); a(f"s_add_u32 s99, s99, {P2}")
    a("v_bfe_u32 v6, v0, 3, 1"); a("v_lshlrev_b32 v6, 7, v6"); a("v_lshrrev_b32 v16, 4, v0"); a("v_lshlrev_b32 v16, 2, v16"); a("v_add_u32 v6, v6, v16"); a("v_add_u32 v7, 64, v6")
    a("v_mov_b32 v33, 0xfffff000"); a("s_mov_b32 s96, 0x3db8aa3b")
    a("s_cmp_eq_u32 s3, 15"); a("s_cselect_b32 s97, 8, 16"); a("v_and_b32 v20, 15, v0"); a("v_cmp_gt_u32 s[46:47], s97, v20")
    a("s_branch L_p1chk")
    a.label("L_p1poll")
    a("s_cmp_eq_u32 s100, 2"); a("s_cbranch_scc1 L_p1rf")
    if p1retry: a(f"s_sleep {p1retry}")
    a.label("L_p1rf")
    p1ld()
    a.label("L_p1chk")
    a("s_add_u32 s98, s98, 1")
    a("s_waitcnt vmcnt(0)")
    untag(GR, 4)
    or_tree(range(GR, GR + 16), "v16")
    a("s_cbranch_vccz L_p1ok")
    a(f"s_cmp_gt_u32 s98, {SPIN_MAX}"); a("s_cbranch_scc0 L_p1poll")
    a.label("L_p1ok")
    stamp(6)
    if stamps: a("s_mov_b32 s101, s98")
    G = GR
    a(f"v_max3_f32 v16, v{G}, v{G+4}, v{G+8}"); a(f"v_max_f32 v16, v16, v{G+12}")
    a(f"v_max_f32_dpp v16, v16, v16 row_ror:8 {DPP}")
    a("v_mov_b32 v17, v16"); a("v_permlane16_swap_b32 v16, v17"); a("v_max_f32 v16, v16, v17")
    for i in range(4): a(f"v_sub_f32 v{20+i}, v{G+4*i}, v16")
    for i in range(4): a(f"v_mul_f32 v{20+i}, s96, v{20+i}")
    for i in range(4): a(f"v_exp_f32 v{20+i}, v{20+i}")
    a(f"v_mul_f32 v17, v20, v{G+1}")
    for i in range(1, 4): a(f"v_fmac_f32 v17, v{20+i}, v{G+4*i+1}")
    for t in range(4): a(f"v_mul_f32_dpp v{24+t}, v20, v{G+t} row_shl:4 {DPP}")
    a(f"v_add_f32_dpp v17, v17, v17 row_ror:8 {DPP}")
    for i in range(1, 4):
        for t in range(4): a(f"v_fmac_f32_dpp v{24+t}, v{20+i}, v{G+4*i+t} row_shl:4 {DPP}")
        if i == 1: a("v_mov_b32 v18, v17")
        if i == 2: a("v_permlane16_swap_b32 v17, v18"); a("v_add_f32 v17, v17, v18")
        if i == 3: a("v_rcp_f32 v17, v17")
    for t in range(4): a(f"v_add_f32_dpp v{24+t}, v{24+t}, v{24+t} row_ror:8 {DPP}")
    a("v_permlane16_swap_b32 v24, v25"); a("v_permlane16_swap_b32 v26, v27")
    a("v_add_f32 v24, v24, v25"); a("v_add_f32 v26, v26, v27")
    a(f"v_mul_f32_dpp v24, v17, v24 row_shl:4 {DPP}"); a(f"v_mul_f32_dpp v26, v17, v26 row_shl:4 {DPP}")
    a("v_cvt_pk_bf16_f32 v24, v24, v24"); a("v_cvt_pk_bf16_f32 v26, v26, v26")
    a("ds_bpermute_b32 v20, v6, v24"); a("ds_bpermute_b32 v21, v7, v24"); a("ds_bpermute_b32 v22, v6, v26"); a("ds_bpermute_b32 v23, v7, v26")
    AR = 68
    for t in range(4):
        a(f"s_waitcnt lgkmcnt({3-t})")
        for r in range(4): a(f"v_and_b32 v{AR+4*t+r}, v{20+t}, v{8+r}")
        c = "0" if t == 0 else "v[12:15]"
        a(f"v_mfma_f32_16x16x32_bf16 v[12:15], v[{AR+4*t}:{AR+4*t+3}], v[{WOR+4*t}:{WOR+4*t+3}], {c}")
    for i in range(4): a(f"v_and_or_b32 v{16+i}, v{12+i}, v33, {T[i]}")
    a("s_mov_b64 s[74:75], exec"); a("s_mov_b64 exec, s[46:47]")
    a(f"buffer_store_dwordx4 v[16:19], v5, {WS}, s99 offen sc1")
    a("s_mov_b64 exec, s[74:75]")
    lds_inc(L_P2CNT)
    a("s_setprio 0")
    stamp(7)
    a("s_branch L_aux_done")

    a.label("L_aux")
    a(f"s_cmp_eq_u32 s3, {fw}"); a("s_cbranch_scc0 L_ygather")
    a("s_cmp_lt_u32 s2, 224"); a("s_cbranch_scc0 L_aux_done")
    a("s_and_b32 s74, s2, 1"); a("s_cmp_eq_u32 s74, 0"); a("s_cbranch_scc0 L_aux_done")
    pub_lane_addr("v4", "v6", "v7")
    a("s_lshr_b32 s74, s2, 1"); a("s_lshl_b32 s74, s74, 7"); a(f"s_add_u32 s74, s74, {YP}")
    for c in range(4):
        if c == 3:
            a("v_and_b32 v5, 15, v0"); a("v_cmp_gt_u32 vcc, 8, v5"); a("s_and_saveexec_b64 s[96:97], vcc")
        a(f"buffer_store_dwordx4 v[{100+4*c}:{103+4*c}], v4, {WS}, s74 offen sc1")
        if c == 3: a("s_mov_b64 exec, s[96:97]")
        else: a(f"s_add_u32 s74, s74, {4*R2}")
    a("s_branch L_aux_done")

    a.label("L_ygather")
    a("s_cmp_lt_u32 s2, 28"); a("s_cbranch_scc0 L_exit")
    if fw == 1:
        a("s_sub_u32 s75, s3, 1"); a("s_cmp_eq_u32 s3, 0"); a("s_cselect_b32 s75, 0, s75")
    elif fw == 2:
        a("s_cmp_eq_u32 s3, 3"); a("s_cselect_b32 s75, 2, s3")
    else:
        a("s_mov_b32 s75, s3")
    a("s_sub_u32 s74, s3, 5"); a("s_cmp_ge_u32 s3, 8"); a("s_cselect_b32 s75, s74, s75")
    a(f"s_mul_i32 s74, s2, {R2}"); a("s_lshl_b32 s96, s75, 11"); a("s_add_u32 s74, s74, s96"); a(f"s_add_u32 s74, s74, {YP}")
    a("v_lshlrev_b32 v4, 4, v0"); a("s_mov_b32 s98, 0")
    col_addr("v5", "v6"); a("s_lshl_b32 s75, s75, 7"); a("v_add_u32 v5, s75, v5")
    lds_wait_ge(L_PUBCNT, 4, "L_ypw", 2)
    if p1delay: a(f"s_sleep {p1delay}")
    a.label("L_ypoll")
    for i in range(2): a(f"buffer_load_dwordx4 v[{36+4*i}:{39+4*i}], v4, {WS}, s74 offen offset:{1024*i} sc1")
    a("s_add_u32 s98, s98, 1"); a("s_waitcnt vmcnt(0)")
    untag(36, 2)
    or_tree(range(36, 44), "v16")
    a("s_cbranch_vccz L_yok")
    a(f"s_sleep {max(p1retry, 8)}")
    a(f"s_cmp_gt_u32 s98, {SPIN_MAX}"); a("s_cbranch_scc0 L_ypoll")
    a.label("L_yok")
    for k in range(4): a(f"v_add_f32 v{36+k}, v{36+k}, v{40+k}")
    reduce4(36)
    a("v_and_b32 v6, 8, v0"); a("v_cmp_eq_u32 vcc, 0, v6"); a("s_and_saveexec_b64 s[74:75], vcc")
    a(f"ds_write_b32 v5, v36 offset:{L_YR}")
    a("s_mov_b64 exec, s[74:75]")
    a("s_waitcnt lgkmcnt(0)")
    lds_inc(L_YCNT)
    a("s_cmp_eq_u32 s3, 0"); a("s_cbranch_scc0 L_final")
    a("s_mul_hi_u32 s74, s2, 0x12492493")
    a("s_mul_i32 s75, s74, 14"); a("s_sub_u32 s75, s2, s75")
    a("s_mul_i32 s74, s74, 896"); a("s_lshl_b32 s75, s75, 6"); a("s_add_u32 s99, s74, s75")
    a("v_and_b32 v50, 31, v0"); a("v_lshlrev_b32 v51, 1, v50")
    a(f"buffer_load_ushort v52, v51, {XS}, s99 offen")
    lds_wait_ge(L_YCNT, 7, "L_ywait")
    a("v_lshlrev_b32 v53, 2, v50")
    for k in range(7): a(f"ds_read_b32 v{36+k}, v53 offset:{L_YR + 128*k}")
    a("s_waitcnt lgkmcnt(0)")
    a("v_add_f32 v36, v36, v37"); a("v_add_f32 v38, v38, v39"); a("v_add_f32 v40, v40, v41"); a("v_add_f32 v36, v36, v42")
    a("v_add_f32 v36, v36, v38"); a("v_add_f32 v36, v36, v40")
    a("v_cvt_pk_bf16_f32 v36, v36, v36"); a("v_and_b32 v36, 0xffff0000, v36")
    a("v_mul_f32 v37, 0xbfb8aa3b, v36"); a("v_exp_f32 v37, v37"); a("v_add_f32 v37, 1.0, v37"); a("v_rcp_f32 v37, v37"); a("v_mul_f32 v37, v36, v37")
    a("v_cvt_pk_bf16_f32 v37, v37, v37"); a("v_and_b32 v54, 0xffff0000, v37")
    a("s_waitcnt vmcnt(0)"); a("v_lshlrev_b32 v52, 16, v52")
    a("v_lshrrev_b32 v55, 5, v0"); a("v_lshlrev_b32 v55, 10, v55"); a("v_add_u32 v55, v55, v53")
    a("s_branch L_final")

    a.label("L_aux_done")
    a("s_cmp_lt_u32 s2, 28"); a("s_cbranch_scc0 L_exit")
    a.label("L_final")
    a(f"s_mul_i32 s74, s2, {R2}"); a("s_lshl_b32 s75, s3, 11"); a("s_add_u32 s74, s74, s75"); a(f"s_add_u32 s74, s74, {P2}")
    a("v_lshlrev_b32 v4, 4, v0"); a("s_mov_b32 s98, 0")
    col_addr("v5", "v6"); a("s_lshl_b32 s75, s3, 7"); a("v_add_u32 v5, s75, v5")
    a("v_and_b32 v6, 8, v0"); a("v_cmp_eq_u32 s[46:47], 0, v6")
    lds_wait_ge(L_P2CNT, 4, "L_p2w", 1)
    if stamps:
        a("s_cmp_lt_u32 s3, 2"); a("s_cbranch_scc1 L_nost"); a("s_cmp_eq_u32 s3, 12"); a("s_cbranch_scc1 L_nost")
        stamp(11)
        a.label("L_nost")
    a.label("L_fpoll")
    for i in range(2): a(f"buffer_load_dwordx4 v[{36+4*i}:{39+4*i}], v4, {WS}, s74 offen offset:{1024*i} sc1")
    a("s_add_u32 s98, s98, 1"); a("s_waitcnt vmcnt(0)")
    untag(36, 2)
    or_tree(range(36, 44), "v16")
    a("s_cbranch_vccz L_fok")
    a(f"s_cmp_gt_u32 s98, {SPIN_MAX}"); a("s_cbranch_scc0 L_fpoll")
    a.label("L_fok")
    stamp(8)
    if stamps:
        a("s_cmp_eq_u32 s3, 12"); a("s_cselect_b32 s101, s101, s98")
    for k in range(4): a(f"v_add_f32 v{36+k}, v{36+k}, v{40+k}")
    reduce4(36)
    a("s_mov_b64 s[74:75], exec"); a("s_mov_b64 exec, s[46:47]")
    a(f"ds_write_b32 v5, v36 offset:{L_SR}")
    a("s_mov_b64 exec, s[74:75]")
    a("s_waitcnt lgkmcnt(0)")
    a("s_barrier")
    a("s_cmp_eq_u32 s3, 0"); a("s_cbranch_scc1 L_epi")
    a("s_cmp_eq_u32 s3, 1"); a("s_cbranch_scc0 L_exit"); a("s_cmp_eq_u32 s2, 0"); a("s_cbranch_scc0 L_exit")
    a("s_mov_b64 exec, 1")
    a("v_mov_b32 v4, s68"); a("v_mov_b32 v5, s69"); a("v_mov_b32 v6, 0")
    a(f"buffer_store_dwordx2 v[4:5], v6, {WS}, 0 offen")
    a("s_branch L_exit")
    a.label("L_epi")
    for k in range(8): a(f"ds_read_b32 v{36+k}, v55 offset:{L_SR + 128*k}")
    a("s_waitcnt lgkmcnt(4)")
    a("v_add_f32 v36, v36, v37"); a("v_add_f32 v38, v38, v39")
    a("s_waitcnt lgkmcnt(0)")
    a("v_add_f32 v40, v40, v41"); a("v_add_f32 v42, v42, v43")
    a("v_add_f32 v36, v36, v38"); a("v_add_f32 v40, v40, v42"); a("v_add_f32 v36, v36, v40")
    a("v_mov_b32 v37, v36"); a("v_permlane32_swap_b32 v36, v37"); a("v_add_f32 v36, v36, v37")
    a("v_cvt_pk_bf16_f32 v36, v36, v36"); a("v_and_b32 v36, 0xffff0000, v36")
    a("v_mul_f32 v36, v36, v54"); a("v_cvt_pk_bf16_f32 v36, v36, v36"); a("v_and_b32 v36, 0xffff0000, v36")
    a("v_add_f32 v36, v52, v36"); a("v_cvt_pk_bf16_f32 v36, v36, v36")
    a(f"s_mov_b64 exec, {mLO}")
    a(f"buffer_store_short v36, v51, {OUT}, s99 offen")
    a("s_branch L_exit")

    a.label("L_ffn2")
    a("s_waitcnt lgkmcnt(0)")
    srd(48, sWD, 1792 * 896)
    a("s_lshr_b32 s75, s2, 1"); a(f"s_mul_i32 s74, s75, {16*896}")
    a("v_lshrrev_b32 v6, 2, v0"); a("v_mul_u32_u24 v6, 7168, v6"); a("v_and_b32 v5, 3, v0"); a("v_lshlrev_b32 v5, 4, v5"); a("v_add_u32 v6, v6, v5")
    a("s_lshl_b32 s75, s75, 6"); a(f"s_add_u32 s75, s75, {FP}"); a("s_mov_b32 s98, 0")
    G_, U_, X_, HV = 100, 104, 108, 112
    a(f"buffer_load_dwordx4 v[{G_}:{G_+3}], v6, {WS}, s75 offen sc1")
    a("v_lshrrev_b32 v4, 4, v0"); a("v_mul_u32_u24 v4, 3584, v4"); a("v_and_b32 v5, 15, v0"); a("v_lshlrev_b32 v5, 4, v5"); a("v_add_u32 v4, v4, v5")
    WD16 = lambda t, c: 36 + (t * 4 + c) * 4
    for t in range(4):
        for c in range(4):
            r = WD16(t, c)
            a(f"buffer_load_dwordx4 v[{r}:{r+3}], v4, {WD}, s74 offen offset:{t*896 + c*256} {wflag}")
    a("s_waitcnt vmcnt(16)")
    a("s_branch L_fchk")
    a.label("L_fpoll2")
    if retry_sleep: a(f"s_sleep {retry_sleep}")
    a(f"buffer_load_dwordx4 v[{G_}:{G_+3}], v6, {WS}, s75 offen sc1")
    a("s_waitcnt vmcnt(0)")
    a.label("L_fchk")
    a("s_add_u32 s98, s98, 1")
    untag(G_, 1)
    or_tree(range(G_, G_ + 4), "v16")
    a("s_cbranch_vccz L_fgot")
    a(f"s_cmp_gt_u32 s98, {SPIN_MAX}"); a("s_cbranch_scc0 L_fpoll2")
    a.label("L_fgot")
    for k in range(4): a(f"v_add_f32_dpp v{G_+k}, v{G_+k}, v{G_+k} row_ror:8 {DPP}")
    for k in range(4): a(f"v_mov_b32 v{U_+k}, v{G_+k}")
    for k in range(4): a(f"v_permlane16_swap_b32 v{G_+k}, v{U_+k}")
    for k in range(4): a(f"v_add_f32 v{G_+k}, v{G_+k}, v{U_+k}")
    for k in range(4): a(f"v_mov_b32 v{U_+k}, v{G_+k}")
    for k in range(4): a(f"v_permlane32_swap_b32 v{G_+k}, v{U_+k}")
    for k in range(4): a(f"v_cvt_pk_bf16_f32 v{G_+k}, v{G_+k}, v{U_+k}")
    for k in range(4):
        a(f"v_and_b32 v{U_+k}, 0xffff0000, v{G_+k}"); a(f"v_lshlrev_b32 v{G_+k}, 16, v{G_+k}")
    a("s_mov_b32 s96, 0x3d372713"); a("s_mov_b32 s97, 0xc0135761")
    for k in range(4): a(f"v_mul_f32 v{X_+k}, v{G_+k}, v{G_+k}")
    for k in range(4): a(f"v_fma_f32 v{X_+k}, v{X_+k}, s96, 1.0")
    for k in range(4): a(f"v_mul_f32 v{X_+k}, v{X_+k}, v{G_+k}")
    for k in range(4): a(f"v_mul_f32 v{X_+k}, s97, v{X_+k}")
    for k in range(4): a(f"v_exp_f32 v{X_+k}, v{X_+k}")
    for k in range(4): a(f"v_add_f32 v{X_+k}, 1.0, v{X_+k}")
    for k in range(4): a(f"v_rcp_f32 v{X_+k}, v{X_+k}")
    for k in range(4): a(f"v_mul_f32 v{X_+k}, v{X_+k}, v{G_+k}")
    for k in range(4): a(f"v_cvt_pk_bf16_f32 v{X_+k}, v{X_+k}, v{X_+k}")
    for k in range(4): a(f"v_and_b32 v{X_+k}, 0xffff0000, v{X_+k}")
    for k in range(4): a(f"v_mul_f32 v{X_+k}, v{X_+k}, v{U_+k}")
    for k in range(4): a(f"v_cvt_pk_bf16_f32 v{X_+k}, v{X_+k}, v{X_+k}")
    a("v_lshlrev_b32 v5, 4, v0"); a("v_cmp_gt_u32 vcc, 8, v0"); a("s_and_saveexec_b64 s[96:97], vcc")
    a(f"ds_write_b128 v5, v[{X_}:{X_+3}] offset:{L_HD}")
    a("s_mov_b64 exec, s[96:97]")
    a("v_bfe_u32 v5, v0, 3, 1"); a("v_lshlrev_b32 v5, 6, v5"); a("v_lshrrev_b32 v7, 4, v0"); a("v_lshlrev_b32 v7, 4, v7"); a("v_add_u32 v5, v5, v7")
    a("s_waitcnt lgkmcnt(0)")
    a(f"ds_read_b128 v[{HV}:{HV+3}], v5 offset:{L_HD}")
    a("v_mov_b32 v116, 0xfffff000")
    a("s_waitcnt lgkmcnt(0) vmcnt(0)")
    for t in range(4):
        for r in range(4): a(f"v_and_b32 v{20+4*t+r}, v{HV+t}, v{8+r}")
    for half in range(2):
        for cc in range(2):
            c = 2 * half + cc
            for t in range(4):
                r = WD16(t, c)
                src = "0" if t == 0 else f"v[{12+4*cc}:{15+4*cc}]"
                a(f"v_mfma_f32_16x16x32_bf16 v[{12+4*cc}:{15+4*cc}], v[{20+4*t}:{23+4*t}], v[{r}:{r+3}], {src}")
        for cc in range(2):
            c = 2 * half + cc
            for k in range(4): a(f"v_and_or_b32 v{100+4*c+k}, v{12+4*cc+k}, v116, {T[k]}")
    stamp(11)
    a("s_branch L_ffn2_done")

    a.label("L_exit")
    if stamps:
        a("s_memrealtime s[96:97]")
        a("s_waitcnt lgkmcnt(0)")
        a("s_lshl_b32 s74, s2, 4"); a("s_add_u32 s74, s74, s3"); a("s_lshl_b32 s74, s74, 6"); a(f"s_add_u32 s74, s74, {STAMP}")
        a("s_mov_b64 exec, 1")
        a("v_mov_b32 v4, 0")
        for k in range(10): a(f"v_mov_b32 v{20+k}, s{76+2*k}")
        a("v_mov_b32 v30, s96"); a("s_getreg_b32 s75, hwreg(HW_REG_XCC_ID)"); a("v_mov_b32 v31, s75")
        a("v_mov_b32 v32, s101"); a(f"buffer_store_dword v32, v4, {WS}, s74 offen offset:48")
        for q in range(3):
            a(f"buffer_store_dwordx4 v[{20+4*q}:{23+4*q}], v4, {WS}, s74 offen offset:{16*q}")
    a.label("L_end")
    a("s_endpgm")
    a.label("L_codeend")

    head = [
        "; Fused decode step: LayerNorm -> {GQA sliding-window attention, GEGLU FFN} -> x + s*silu(f)",
        "; 256 workgroups x 16 waves; cross-workgroup hand-offs use self-tagged 16-byte granules in d_ws.",
        f"; @launch grid=(256,1,1) block=(1024,1,1) lds={LDS_BYTES}",
        '.amdgcn_target "amdgcn-amd-amdhsa--gfx950"',
        ".text", f".globl {KNAME}", ".p2align 8", f".type {KNAME},@function", f"{KNAME}:"]
    tail = ['.section .rodata,"a"', ".p2align 6", f".amdhsa_kernel {KNAME}",
            "  .amdhsa_next_free_vgpr 128", "  .amdhsa_next_free_sgpr 102", "  .amdhsa_accum_offset 128",
            "  .amdhsa_group_segment_fixed_size 0", "  .amdhsa_kernarg_size 96", "  .amdhsa_user_sgpr_count 2",
            "  .amdhsa_user_sgpr_kernarg_segment_ptr 1", "  .amdhsa_system_sgpr_workgroup_id_x 1", ".end_amdhsa_kernel"]
    return "\n".join(head) + "\n" + a.text() + "\n".join(tail) + "\n"

if __name__ == "__main__":
    print(gen(), end="")
```

```python
import sys
sys.path.insert(0, "gen")
from asmlib import Asm

KNAME = "recurrent_scan__sliding_block_cached__geglu_ffn__decode_kernel"

XID = 0x200
QP = 0x1000
FP = 0x21000
P1 = 0x40000
P2 = 0x150000
YP = 0x240000
STAMP = 0x400000
R1 = 4224
R2 = 32896
WS_BYTES = 0x40000000

L_FLAG = 0
L_YCNT = 4
L_PUBCNT = 8
L_P2CNT = 12
L_NEXT = 16
L_S2FLAG = 20
L_S2 = 3392
L_TOK = 64
L_Q = 128
L_XD = 1216
L_HD = 3008
L_ST = 3136
L_SR = 3904
L_YR = 5952
L_OL = 6976
OLS = 2064
LDS_BYTES = L_OL + 16 * OLS

DPP = "row_mask:0xf bank_mask:0xf"
SPIN_MAX = 200000

def gen(stamps=False, kvflag="nt", wflag="nt", D=8, REL=7, qdelay=55, retry_sleep=16, qsleep=2, p1delay=32, p1retry=16,
        codepf=True, rot=(1, 0, 0), ln1=True, dynq=True, Dlast=12, perm=False, Deven=None, RELeven=None, Dlast_even=None, tlbwarm=False, fw=3, ilv=None, toksleep=1, prewarm=0, p1wait_f=None, outwarm=False, dynffn=False, ngw=4, qlate=False, x_qplain=False, cen=True, qdelay_f=25, outflag="", x_nop1=False, x_nop2=False, x_endat=0, order=(4, 5, 10, 11, 0, 1, 8, 9, 12, 13, 14, 15)):
    a = Asm()
    sX, sK, sV, sWQ, sWO, sWG, sWU, sWD, sOUT, sDBG, sWSp = 4, 6, 8, 10, 12, 16, 18, 20, 22, 24, 26
    K, V, WS, TILE, WD, XS, OUT = "s[28:31]", "s[32:35]", "s[36:39]", "s[40:43]", "s[48:51]", "s[52:55]", "s[56:59]"
    T = ["s64", "s65", "s66", "s67"]
    mB3, mLO = "s[70:71]", "s[72:73]"
    KR, VR, WOR, QF = 36, 68, 100, 20

    def stamp(k):
        if stamps:
            k = {9: 6, 10: 7, 11: 9}.get(k, k)
            a(f"s_memrealtime s[{76+2*k}:{77+2*k}]")
    def srd(n, ptr, size):
        a(f"s_mov_b32 s{n}, s{ptr}"); a(f"s_mov_b32 s{n+1}, s{ptr+1}"); a(f"s_mov_b32 s{n+2}, {size:#x}"); a(f"s_mov_b32 s{n+3}, 0x20000")
    def ids():
        a("s_and_b32 s60, s2, 7"); a("s_lshr_b32 s61, s2, 3"); a("s_lshr_b32 s62, s61, 4"); a("s_and_b32 s63, s61, 15")
    def lane_consts():
        a("v_and_b32 v4, 8, v0"); a(f"v_cmp_ne_u32 {mB3}, 0, v4")
        a(f"v_cmp_gt_u32 {mLO}, 32, v0")
        a("v_and_b32 v4, 7, v0"); a("v_and_b32 v5, 1, v0"); a("v_cmp_eq_u32 vcc, 1, v5")
        a("v_mov_b32 v6, 0xffff"); a("v_mov_b32 v7, 0xffff0000"); a("v_cndmask_b32 v6, v6, v7, vcc")
        a("v_lshrrev_b32 v4, 1, v4")
        for r in range(4):
            a(f"v_cmp_eq_u32 vcc, {r}, v4"); a(f"v_cndmask_b32 v{8+r}, 0, v6, vcc")
        a("v_lshrrev_b32 v4, 4, v0"); a("v_lshlrev_b32 v4, 9, v4"); a("v_and_b32 v5, 15, v0"); a("v_lshlrev_b32 v5, 4, v5"); a("v_add_u32 v1, v4, v5")
        if ilv is None:
            a("s_mov_b32 s74, s3")
            for coef, reg in zip(rot, ("s63", "s60", "s62")):
                if coef == 1: a(f"s_add_u32 s74, s74, {reg}")
                elif coef: a(f"s_mul_i32 s75, {reg}, {coef}"); a("s_add_u32 s74, s74, s75")
            a("s_and_b32 s74, s74, 15")
            a("s_lshl_b32 s75, s62, 3"); a("s_add_u32 s75, s75, s60"); a("s_lshl_b32 s75, s75, 24"); a("s_add_u32 s75, s75, 0xE00000")
            a("s_lshl_b32 s46, s63, 17"); a("s_add_u32 s75, s75, s46"); a("s_lshl_b32 s74, s74, 13"); a("s_add_u32 s44, s74, s75")
            a("s_add_u32 s45, s44, 4096")
        else:
            grp = {2:(0,0), 3:(0,1), 6:(0,2), 7:(0,3), 4:(1,0), 5:(1,1), 10:(1,2), 11:(1,3), 0:(2,0), 1:(2,1), 8:(2,2), 9:(2,3), 12:(3,0), 13:(3,1), 14:(3,2), 15:(3,3)}
            tab = sum((g * 4 + j) << (4 * w) for w, (g, j) in grp.items())
            a(f"s_mov_b32 s74, {tab & 0xffffffff:#x}"); a(f"s_mov_b32 s75, {tab >> 32:#x}"); a("s_lshl_b32 s46, s3, 2"); a("s_lshr_b64 s[74:75], s[74:75], s46")
            a("s_and_b32 s46, s74, 3")
            a("s_lshr_b32 s74, s74, 2"); a("s_and_b32 s74, s74, 3")
            cg, cj, ck = ilv
            if cg: a(f"s_mul_i32 s75, s63, {cg}"); a("s_add_u32 s74, s74, s75")
            if ck: a(f"s_mul_i32 s75, s60, {ck}"); a("s_add_u32 s74, s74, s75")
            a("s_and_b32 s74, s74, 3")
            if cj: a("s_lshr_b32 s75, s63, 2"); a(f"s_mul_i32 s75, s75, {cj}"); a("s_add_u32 s46, s46, s75"); a("s_and_b32 s46, s46, 3")
            a("s_lshl_b32 s74, s74, 15"); a("s_lshl_b32 s46, s46, 11"); a("s_add_u32 s74, s74, s46")
            a("s_lshl_b32 s75, s62, 3"); a("s_add_u32 s75, s75, s60"); a("s_lshl_b32 s75, s75, 24"); a("s_add_u32 s75, s75, 0xE00000")
            a("s_lshl_b32 s46, s63, 17"); a("s_add_u32 s75, s75, s46"); a("s_add_u32 s44, s74, s75")
            a("s_add_u32 s45, s44, 8192")
    def late_srds():
        srd(28, sK, 0x10000000); srd(32, sV, 0x10000000); srd(56, sOUT, 1792)
    def make_tags():
        a("s_add_u32 s68, s68, 1"); a("s_addc_u32 s69, s69, 0")
        a("s_mul_i32 s96, s68, 0x7f4a7c15"); a("s_mul_hi_u32 s97, s68, 0x7f4a7c15")
        a("s_mul_i32 s75, s68, 0x9e3779b9"); a("s_add_u32 s97, s97, s75")
        a("s_mul_i32 s75, s69, 0x7f4a7c15"); a("s_add_u32 s97, s97, s75")
        a("s_and_b32 s64, s96, 0xfff"); a("s_bfe_u32 s65, s96, 0xc000c")
        a("s_lshr_b32 s66, s96, 24"); a("s_lshl_b32 s75, s97, 8"); a("s_or_b32 s66, s66, s75"); a("s_and_b32 s66, s66, 0xfff")
        a("s_bfe_u32 s67, s97, 0xc0004")
    def lds_wait_ge(addr, val, lab, sleep=0):
        a("v_mov_b32 v2, 0"); a("s_mov_b32 s97, 0")
        a.label(lab)
        a(f"ds_read_b32 v3, v2 offset:{addr}"); a("s_add_u32 s97, s97, 1"); a("s_waitcnt lgkmcnt(0)")
        a(f"v_cmp_le_u32 vcc, {val}, v3"); a(f"s_cbranch_vccnz {lab}_ok")
        if sleep: a(f"s_sleep {sleep}")
        a(f"s_cmp_gt_u32 s97, {SPIN_MAX*8}"); a(f"s_cbranch_scc0 {lab}")
        a.label(lab + "_ok")
    def lds_inc(addr):
        a("v_mov_b32 v2, 0"); a("v_mov_b32 v3, 1"); a("s_mov_b64 s[96:97], exec"); a("s_mov_b64 exec, 1")
        a(f"ds_add_u32 v2, v3 offset:{addr}")
        a("s_mov_b64 exec, s[96:97]")
    def or_tree(regs, dst):
        regs = list(regs)
        a(f"v_or3_b32 {dst}, v{regs[0]}, v{regs[1]}, v{regs[2]}"); regs = regs[3:]
        while len(regs) >= 2:
            a(f"v_or3_b32 {dst}, {dst}, v{regs[0]}, v{regs[1]}"); regs = regs[2:]
        if regs: a(f"v_or_b32 {dst}, {dst}, v{regs[0]}")
        a(f"v_and_b32 {dst}, 0xfff, {dst}"); a(f"v_cmp_ne_u32 vcc, 0, {dst}")
    def untag(base, n):
        for i in range(n):
            for k in range(4): a(f"v_xor_b32 v{base+4*i+k}, {T[k]}, v{base+4*i+k}")
    def pub_lane_addr(dst, t1, t2):
        a(f"v_lshrrev_b32 {t1}, 5, v0"); a(f"v_mul_u32_u24 {t1}, 14, {t1}"); a(f"v_bfe_u32 {t2}, v0, 2, 2"); a(f"v_add_u32 {t1}, {t1}, {t2}")
        a(f"v_mul_u32_u24 {dst}, {R2}, {t1}")
        a(f"v_and_b32 {t1}, 3, v0"); a(f"v_lshlrev_b32 {t1}, 5, {t1}"); a(f"v_bfe_u32 {t2}, v0, 4, 1"); a(f"v_lshlrev_b32 {t2}, 4, {t2}")
        a(f"v_add3_u32 {dst}, {dst}, {t1}, {t2}")
    def reduce4(base):
        for k in range(4): a(f"v_add_f32_dpp v{base+k}, v{base+k}, v{base+k} row_ror:8 {DPP}")
        a(f"v_permlane16_swap_b32 v{base}, v{base+1}"); a(f"v_permlane16_swap_b32 v{base+2}, v{base+3}")
        a(f"v_add_f32 v{base}, v{base}, v{base+1}"); a(f"v_add_f32 v{base+2}, v{base+2}, v{base+3}")
        a(f"v_permlane32_swap_b32 v{base}, v{base+2}"); a(f"v_add_f32 v{base}, v{base}, v{base+2}")
    def col_addr(dst, t1):
        a(f"v_and_b32 {dst}, 7, v0"); a(f"v_lshlrev_b32 {dst}, 4, {dst}"); a(f"v_lshrrev_b32 {t1}, 5, v0"); a(f"v_lshlrev_b32 {t1}, 3, {t1}"); a(f"v_add_u32 {dst}, {dst}, {t1}")
        a(f"v_bfe_u32 {t1}, v0, 4, 1"); a(f"v_lshlrev_b32 {t1}, 2, {t1}"); a(f"v_add_u32 {dst}, {dst}, {t1}")

    a.c("---- entry: extra workgroups leave; s3 = wave, v0 = lane; flags/tokens in LDS are zeroed ----")
    a("s_cmp_ge_u32 s2, 256"); a("s_cbranch_scc1 L_end")
    if perm:
        a("s_mul_i32 s2, s2, 37"); a("s_add_u32 s2, s2, 11"); a("s_and_b32 s2, s2, 255")
    a("s_load_dwordx16 s[4:19], s[0:1], 0")
    a("s_load_dwordx8 s[20:27], s[0:1], 64")
    stamp(0)
    a("v_lshrrev_b32 v1, 6, v0"); a("v_and_b32 v0, 63, v0")
    a("v_lshlrev_b32 v2, 1, v0"); a("v_mov_b32 v3, 0")
    a("v_readfirstlane_b32 s3, v1")
    a("v_and_b32 v2, 0x7c, v2")
    a("ds_write_b32 v2, v3")
    a("s_cmp_lt_u32 s3, 2"); a("s_cbranch_scc0 L_dpro")

    a.c("---- control waves: wave 0 = wq tile (rows 112*rb.., 64 columns), wave 1 = w_gate/w_up tile ----")
    a("s_setprio 3")
    ids()
    a("s_cmp_eq_u32 s3, 0"); a("s_cbranch_scc0 L_ctrl1")
    a("s_lshr_b32 s74, s61, 3"); a("s_and_b32 s75, s61, 7")
    a(f"s_mul_i32 s96, s74, {112*8192}"); a("s_lshl_b32 s97, s60, 10"); a("s_add_u32 s96, s96, s97"); a("s_lshl_b32 s97, s75, 7"); a("s_add_u32 s96, s96, s97")
    a("s_lshl_b32 s98, s60, 3"); a("s_add_u32 s98, s98, s74"); a("s_lshl_b32 s98, s98, 11")
    a("s_lshl_b32 s99, s75, 8"); a("s_add_u32 s98, s98, s99"); a(f"s_add_u32 s98, s98, {QP}")
    a("s_mov_b32 s99, 8192"); a("s_mov_b32 s97, 8192"); a(f"s_mov_b32 s42, {448*8192:#x}")
    a("s_waitcnt lgkmcnt(0)")
    a("s_mov_b32 s40, s10"); a("s_mov_b32 s41, s11")
    a("s_branch L_tile")
    a.label("L_ctrl1")
    a("s_lshr_b32 s47, s2, 1"); a("s_and_b32 s75, s2, 1"); a("s_lshl_b32 s75, s75, 7"); a("s_add_u32 s47, s47, s75")
    a("s_cmp_lt_u32 s47, 224"); a("s_cbranch_scc0 L_notile")
    a("s_lshr_b32 s75, s47, 1"); a("s_mul_i32 s74, s75, 4682"); a("s_lshr_b32 s74, s74, 17")
    a("s_mul_i32 s96, s74, 28"); a("s_sub_u32 s75, s75, s96")
    a(f"s_mul_i32 s96, s74, {112*3584}"); a("s_lshl_b32 s97, s75, 7"); a("s_add_u32 s96, s96, s97")
    a("s_and_b32 s99, s47, 1")
    a("s_lshl_b32 s98, s99, 2"); a("s_add_u32 s98, s98, s74"); a("s_mul_i32 s98, s98, 14336")
    a("s_lshl_b32 s97, s75, 8"); a("s_add_u32 s98, s98, s97"); a(f"s_add_u32 s98, s98, {FP}")
    a(f"s_mov_b32 s42, {448*3584:#x}")
    a("s_cmp_eq_u32 s99, 0")
    a("s_waitcnt lgkmcnt(0)")
    a("s_cselect_b32 s40, s16, s18"); a("s_cselect_b32 s41, s17, s19")
    a("s_mov_b32 s97, 3584"); a("s_mov_b32 s99, 7168")
    a.label("L_tile")
    a("s_mov_b32 s43, 0x20000")
    srd(52, sX, 1792)
    TR = 40
    a("v_lshrrev_b32 v4, 3, v0"); a("v_mul_lo_u32 v4, s97, v4"); a("v_and_b32 v5, 7, v0"); a("v_lshlrev_b32 v5, 4, v5"); a("v_add_u32 v4, v4, v5")
    a("v_and_b32 v6, 31, v0"); a("v_lshrrev_b32 v7, 5, v0"); a("v_mul_u32_u24 v7, 896, v7"); a("v_lshlrev_b32 v5, 5, v6"); a("v_add_u32 v5, v5, v7")
    a("v_cmp_gt_u32 vcc, 28, v6"); a("v_mov_b32 v7, 0x10000"); a("v_cndmask_b32 v5, v7, v5, vcc")
    a(f"buffer_load_dwordx4 v[20:23], v5, {XS}, 0 offen"); a(f"buffer_load_dwordx4 v[24:27], v5, {XS}, 0 offen offset:16")
    a("s_mul_i32 s75, s74, 224"); a("v_lshlrev_b32 v6, 2, v0"); a("v_cmp_gt_u32 vcc, 56, v0"); a("v_cndmask_b32 v6, v7, v6, vcc")
    a(f"buffer_load_dword v28, v6, {XS}, s75 offen"); a(f"buffer_load_dword v29, v6, {XS}, s75 offen offset:896")
    a("s_lshl_b32 s97, s97, 3")
    for t in range(14):
        a(f"buffer_load_dwordx4 v[{TR+4*t}:{TR+4*t+3}], v4, {TILE}, s96 offen {wflag}")
        if t < 13: a("s_add_u32 s96, s96, s97")
    a("s_load_dwordx2 s[68:69], s[26:27], 0")
    a("s_barrier")
    stamp(9)
    if cen:
        a.c("census in d_debug (zero at launch): byte [kvh*32 + r] = 0x80 | XCD id, written through this XCD's L2 only")
        srd(48, sDBG, 256)
        a("s_getreg_b32 s46, hwreg(HW_REG_XCC_ID)"); a("s_and_b32 s46, s46, 15"); a("s_or_b32 s46, s46, 0x80")
        a("s_lshl_b32 s47, s60, 5")
        a("s_cmp_eq_u32 s3, 0"); a("s_cbranch_scc0 L_nocen")
        a("v_mov_b32 v5, s46"); a("v_mov_b32 v7, s61"); a("s_mov_b64 exec, 1")
        a("buffer_store_byte v5, v7, s[48:51], s47 offen")
        a("s_mov_b64 exec, -1")
        a.label("L_nocen")
    srd(36, sWSp, WS_BYTES)
    late_srds()
    lane_consts()
    a("s_waitcnt lgkmcnt(0)")
    make_tags()
    a.c("---- LayerNorm statistics (lanes < 32: batch 0, lanes >= 32: batch 1), rounded like the bf16 reference ----")
    a("s_mov_b32 s74, 0x3f803f80")
    a("s_waitcnt vmcnt(16)")
    if cen:
        a("s_lshl_b32 s47, s60, 5"); a("v_and_b32 v5, 31, v0"); a("buffer_load_ubyte v36, v5, s[48:51], s47 offen sc1")
    a("v_dot2_f32_bf16 v30, v20, s74, 0"); a("v_dot2_f32_bf16 v31, v20, v20, 0")
    for j in range(1, 8):
        a(f"v_dot2c_f32_bf16 v30, s74, v{20+j}"); a(f"v_dot2c_f32_bf16 v31, v{20+j}, v{20+j}")
    for m in ("row_ror:8", "row_ror:4", "row_ror:2", "row_ror:1"):
        a(f"v_add_f32_dpp v30, v30, v30 {m} {DPP}"); a(f"v_add_f32_dpp v31, v31, v31 {m} {DPP}")
    a("v_mov_b32 v32, v30"); a("v_mov_b32 v33, v31")
    a("v_permlane16_swap_b32 v30, v32"); a("v_permlane16_swap_b32 v31, v33")
    a("v_add_f32 v30, v30, v32"); a("v_add_f32 v31, v31, v33")
    a("v_mul_f32 v30, 0x3b124925, v30")
    a("v_mul_f32 v31, 0x3b124925, v31")
    a("v_fma_f32 v31, -v30, v30, v31"); a("v_max_f32 v31, 0, v31")
    a("v_cvt_pk_bf16_f32 v31, v31, v30")
    a("v_and_b32 v30, 0xffff0000, v31")
    a("v_lshlrev_b32 v31, 16, v31")
    a("v_add_f32 v31, 0x3727c5ac, v31"); a("v_cvt_pk_bf16_f32 v31, v31, v31"); a("v_and_b32 v31, 0xffff0000, v31")
    a("v_sqrt_f32 v31, v31"); a("v_cvt_pk_bf16_f32 v31, v31, v31"); a("v_and_b32 v31, 0xffff0000, v31")
    a("v_rcp_f32 v31, v31")
    a("v_readlane_b32 s74, v30, 0"); a("v_readlane_b32 s75, v30, 32"); a("v_readlane_b32 s96, v31, 0"); a("v_readlane_b32 s97, v31, 32")
    a(f"s_waitcnt vmcnt({15 if cen else 14})")
    for b in range(2):
        a(f"v_lshlrev_b32 v{96+2*b}, 16, v{28+b}"); a(f"v_and_b32 v{97+2*b}, 0xffff0000, v{28+b}")
    for b in range(2):
        a(f"v_subrev_f32 v{96+2*b}, s{74+b}, v{96+2*b}"); a(f"v_subrev_f32 v{97+2*b}, s{74+b}, v{97+2*b}")
    for b in range(2): a(f"v_cvt_pk_bf16_f32 v{100+b}, v{96+2*b}, v{97+2*b}")
    for b in range(2):
        a(f"v_lshlrev_b32 v{96+2*b}, 16, v{100+b}"); a(f"v_and_b32 v{97+2*b}, 0xffff0000, v{100+b}")
    for b in range(2):
        a(f"v_mul_f32 v{96+2*b}, s{96+b}, v{96+2*b}"); a(f"v_mul_f32 v{97+2*b}, s{96+b}, v{97+2*b}")
    for j in range(4): a(f"v_cvt_pk_bf16_f32 v{96+j}, v{96+j}, v{96+j}")
    a("s_mul_i32 s74, s3, 896"); a("v_lshlrev_b32 v6, 3, v0"); a("v_add_u32 v6, s74, v6")
    a("v_cmp_gt_u32 vcc, 56, v0"); a("s_and_saveexec_b64 s[96:97], vcc")
    a(f"ds_write_b64 v6, v[96:97] offset:{L_XD}"); a(f"ds_write_b64 v6, v[98:99] offset:{L_XD+448}")
    a("s_mov_b64 exec, s[96:97]")
    a("v_lshrrev_b32 v6, 3, v0"); a("v_lshlrev_b32 v6, 2, v6"); a("v_add_u32 v6, s74, v6")
    a("s_waitcnt lgkmcnt(0)")
    a.c("---- tile GEMV: B = weight rows as loaded, A = selector matrix carrying xn ----")
    XV = 96
    for t in range(7):
        for b in range(2): a(f"ds_read_b32 v{XV+2*t+b}, v6 offset:{L_XD + b*448 + t*32}")
    a("v_lshrrev_b32 v4, 5, v0"); a("v_mul_lo_u32 v4, s99, v4"); a("v_and_b32 v5, 7, v0"); a("v_lshlrev_b32 v5, 5, v5"); a("v_bfe_u32 v7, v0, 4, 1"); a("v_lshlrev_b32 v7, 4, v7")
    a("v_add3_u32 v4, v4, v5, v7")
    a("s_waitcnt lgkmcnt(0)")
    for t in range(7, 14):
        for b in range(2): a(f"ds_read_b32 v{XV+2*t+b}, v6 offset:{L_XD + b*448 + t*32}")
    for t in range(14):
        A0 = 20 + 8 * (t & 1)
        if t == 7: a("s_waitcnt lgkmcnt(0)")
        for b in range(2):
            for r in range(4): a(f"v_and_b32 v{A0+4*b+r}, v{XV+2*t+b}, v{8+r}")
        a(f"s_waitcnt vmcnt({13-t+(1 if cen else 0)})")
        for b in range(2):
            d = 12 + 4 * b
            c = "0" if t == 0 else f"v[{d}:{d+3}]"
            a(f"v_mfma_f32_16x16x32_bf16 v[{d}:{d+3}], v[{A0+4*b}:{A0+4*b+3}], v[{TR+4*t}:{TR+4*t+3}], {c}")
    a("v_mov_b32 v33, 0xfffff000")
    a("v_bfe_u32 v5, v0, 3, 1"); a("v_lshrrev_b32 v7, 5, v0"); a("v_cmp_eq_u32 vcc, v5, v7")
    for k in range(4):
        a(f"v_mov_b32_dpp v{20+k}, v{12+k} row_ror:8 {DPP}"); a(f"v_mov_b32_dpp v{24+k}, v{16+k} row_ror:8 {DPP}")
    for k in range(4): a(f"v_permlane32_swap_b32 v{20+k}, v{24+k}")
    for k in range(4):
        a(f"v_cndmask_b32 v{28+k}, v{16+k}, v{12+k}, {mLO}"); a(f"v_cndmask_b32 v{20+k}, v{20+k}, v{24+k}, {mLO}")
    for k in range(4): a(f"v_add_f32 v{28+k}, v{28+k}, v{20+k}")
    for k in range(4): a(f"v_and_or_b32 v{28+k}, v{28+k}, v33, {T[k]}")
    if cen:
        a("s_mov_b64 s[74:75], vcc")
        a("s_getreg_b32 s46, hwreg(HW_REG_XCC_ID)"); a("s_and_b32 s46, s46, 15"); a("s_or_b32 s46, s46, 0x80")
        a("s_waitcnt vmcnt(0)")
        a("v_cmp_ne_u32 vcc, s46, v36"); a("s_cmp_eq_u64 vcc, 0"); a("s_cselect_b32 s47, 2, 1"); a("s_cmp_eq_u32 s3, 0"); a("s_cselect_b32 s47, s47, 1")
        a("s_mov_b64 vcc, s[74:75]")
    a("s_and_saveexec_b64 s[96:97], vcc")
    if cen:
        a("s_cmp_eq_u32 s47, 2"); a("s_cbranch_scc0 L_qp1")
        a(f"buffer_store_dwordx4 v[28:31], v4, {WS}, s98 offen")
        a("s_branch L_qp2")
        a.label("L_qp1")
    a(f"buffer_store_dwordx4 v[28:31], v4, {WS}, s98 offen sc1")
    if cen: a.label("L_qp2")
    a("s_mov_b64 exec, s[96:97]")
    a("s_cmp_eq_u32 s3, 0"); a("s_cbranch_scc1 L_qg")
    stamp(10)
    a("s_setprio 0")
    a("s_branch L_kv")
    a.label("L_qg")
    a.c("---- wave 0: publish this workgroup's XCD id, then gather the q partials of its (batch, kv head) ----")
    if not cen:
        a("s_getreg_b32 s46, hwreg(HW_REG_XCC_ID)"); a("s_and_b32 s46, s46, 15")
        a("s_lshl_b32 s47, s65, 12"); a("s_or_b32 s47, s47, s64")
        a("s_lshl_b32 s96, s46, 24"); a("s_or_b32 s96, s96, s47")
        a("s_lshl_b32 s97, s60, 7"); a("s_lshl_b32 s75, s61, 2"); a("s_add_u32 s75, s75, s97"); a(f"s_add_u32 s75, s75, {XID}")
        a("v_mov_b32 v5, s96"); a("v_mov_b32 v7, 0"); a("s_mov_b64 s[98:99], exec"); a("s_mov_b64 exec, 1")
        a(f"buffer_store_dword v5, v7, {WS}, s75 offen {'' if x_qplain else 'sc1'}")
        a("s_mov_b64 exec, s[98:99]")
    stamp(10)
    if qlate:
        a("s_setprio 0"); a("s_branch L_kv")
        a.label("L_qg2")
        a("s_setprio 3"); a("s_lshl_b32 s97, s60, 7")
    a("s_lshl_b32 s74, s60, 1"); a("s_add_u32 s74, s74, s62"); a("s_lshl_b32 s74, s74, 13"); a(f"s_add_u32 s74, s74, {QP}"); a("s_add_u32 s75, s74, 4096")
    a("v_lshlrev_b32 v4, 4, v0"); a("s_mov_b32 s98, 0")
    QG = [100 + 4 * i for i in range(7)] + [20]
    if not cen:
        a("v_and_b32 v5, 31, v0"); a("v_lshlrev_b32 v5, 2, v5"); a(f"s_add_u32 s96, s97, {XID}")
    else:
        a("v_and_b32 v5, 31, v0"); a("s_lshl_b32 s96, s60, 5")
    if qdelay and not qlate:
        a.c("back-off: the partials of the 32 producers need about this long to land; a read that races a write stalls the CU's load queue")
        if cen:
            a("s_cmp_eq_u32 s47, 2"); a("s_cbranch_scc0 L_qds")
            if qdelay_f: a(f"s_sleep {qdelay_f}")
            a("s_branch L_qdd")
            a.label("L_qds")
        a(f"s_sleep {qdelay}")
        if cen: a.label("L_qdd")
    a.label("L_qpoll")
    for i in range(8):
        so = "s74" if i < 4 else "s75"
        a(f"buffer_load_dwordx4 v[{QG[i]}:{QG[i]+3}], v4, {WS}, {so} offen offset:{1024*(i&3)} sc1")
    if not cen: a(f"buffer_load_dword v28, v5, {WS}, s96 offen sc1")
    else: a("buffer_load_ubyte v28, v5, s[48:51], s96 offen sc1")
    a("s_add_u32 s98, s98, 1"); a("s_waitcnt vmcnt(0)")
    for i in range(8):
        for k in range(4): a(f"v_xor_b32 v{QG[i]+k}, {T[k]}, v{QG[i]+k}")
    if not cen: a("v_xor_b32 v29, s47, v28"); a("v_and_b32 v29, 0xffffff, v29"); a("v_min_u32 v29, 1, v29")
    or_tree([QG[i] + k for i in range(8) for k in range(4)] + ([] if cen else [29]), "v16")
    a("s_cbranch_vccz L_qgot")
    if retry_sleep: a(f"s_sleep {retry_sleep}")
    a(f"s_cmp_gt_u32 s98, {SPIN_MAX}"); a("s_cbranch_scc0 L_qpoll")
    a.label("L_qgot")
    for h in range(2):
        for k in range(4):
            a(f"v_add_f32 v{QG[h]+k}, v{QG[h]+k}, v{QG[2+h]+k}"); a(f"v_add_f32 v{QG[4+h]+k}, v{QG[4+h]+k}, v{QG[6+h]+k}")
    for h in range(2):
        for k in range(4): a(f"v_add_f32 v{QG[h]+k}, v{QG[h]+k}, v{QG[4+h]+k}")
    for h in range(2):
        a(f"v_cvt_pk_bf16_f32 v{24+2*h}, v{QG[h]}, v{QG[h]+1}"); a(f"v_cvt_pk_bf16_f32 v{25+2*h}, v{QG[h]+2}, v{QG[h]+3}")
    a("v_lshlrev_b32 v4, 3, v0")
    a(f"ds_write_b64 v4, v[24:25] offset:{L_Q}"); a(f"ds_write_b64 v4, v[26:27] offset:{L_Q+512}")
    if not cen: a("v_lshrrev_b32 v28, 24, v28")
    a("v_cmp_ne_u32 vcc, s46, v28"); a("s_cmp_eq_u64 vcc, 0"); a("s_cselect_b32 s96, 2, 1")
    a("s_waitcnt lgkmcnt(0)")
    a("v_mov_b32 v4, 0"); a("v_mov_b32 v5, s96")
    a(f"ds_write_b32 v4, v5 offset:{L_FLAG}")
    stamp(11)
    a("s_setprio 0")
    a("s_branch L_havetags" if qlate else "s_branch L_kv")
    a.label("L_notile")
    a("s_waitcnt lgkmcnt(0)")
    a("s_load_dwordx2 s[68:69], s[26:27], 0")
    a("s_barrier")
    srd(36, sWSp, WS_BYTES); srd(52, sX, 1792)
    late_srds()
    lane_consts()
    a("s_waitcnt lgkmcnt(0)")
    make_tags()
    a("s_setprio 0")
    a("s_branch L_kv")

    a.label("L_dpro")
    a.c("---- data waves: prologue ----")
    ids()
    lane_consts()
    for n, size in ((28, 0x10000000), (32, 0x10000000), (36, WS_BYTES), (52, 1792), (56, 1792)):
        a(f"s_mov_b32 s{n+2}, {size:#x}"); a(f"s_mov_b32 s{n+3}, 0x20000")
    a("s_waitcnt lgkmcnt(0)")
    for n, ptr in ((28, sK), (32, sV), (36, sWSp), (52, sX), (56, sOUT)):
        a(f"s_mov_b32 s{n}, s{ptr}"); a(f"s_mov_b32 s{n+1}, s{ptr+1}")
    a("s_load_dwordx2 s[68:69], s[26:27], 0")
    a("s_barrier")
    if codepf:
        a("s_cmp_eq_u32 s3, 15"); a("s_cbranch_scc0 L_nopf")
        a("s_getpc_b64 s[96:97]")
        a.label("L_pc")
        a(f"s_sub_u32 s96, s96, L_pc-{KNAME}"); a("s_subb_u32 s97, s97, 0")
        a("s_lshr_b32 s74, s2, 3"); a("s_mul_i32 s74, s74, 384"); a("v_lshlrev_b32 v4, 6, v0"); a("v_add_u32 v4, s74, v4")
        a("v_cmp_gt_u32 s[74:75], 6, v0"); a(f"v_cmp_gt_u32 vcc, L_codeend-{KNAME}, v4"); a("s_and_b64 vcc, vcc, s[74:75]")
        a("s_and_saveexec_b64 s[74:75], vcc")
        a("s_cbranch_execz L_pfskip")
        a("global_load_dword v36, v4, s[96:97]")
        a.label("L_pfskip")
        a("s_mov_b64 exec, s[74:75]")
        a.label("L_nopf")

    if tlbwarm:
        a("s_cmp_eq_u32 s3, 14"); a("s_cbranch_scc0 L_notlb")
        a("v_cmp_gt_u32 vcc, 28, v0"); a(f"v_mul_u32_u24 v4, {R2}, v0"); a("v_mov_b32 v5, 0"); a("v_cndmask_b32 v4, v5, v4, vcc")
        a(f"s_mov_b32 s74, {P2 + 32768}"); a(f"buffer_load_dword v36, v4, {WS}, s74 offen")
        a(f"s_mov_b32 s74, {YP + 32768}"); a(f"buffer_load_dword v37, v4, {WS}, s74 offen")
        a("v_and_b32 v4, 31, v0"); a(f"v_mul_u32_u24 v4, {R1}, v4"); a("s_lshl_b32 s74, s60, 5"); a(f"s_mul_i32 s74, s74, {R1}"); a(f"s_add_u32 s74, s74, {P1 + 4096}")
        a(f"buffer_load_dword v38, v4, {WS}, s74 offen")
        a.label("L_notlb")

    a.label("L_kv")
    a.c("---- K/V issue: four tokens circulate through the waves so that about 32 KB stay in flight per CU ----")
    if ilv is not None: a("s_add_u32 s14, s44, 16384"); a("s_add_u32 s15, s44, 24576")
    loads = []
    for (base, srdn) in ((KR, K), (VR, V)):
        for t in range(4):
            for h in range(2):
                if ilv is None:
                    so = "s44" if t < 2 else "s45"
                    imm = (t & 1) * 2048 + h * 256
                else:
                    so = ("s44", "s45", "s14", "s15")[t]
                    imm = h * 256
                r = base + (t * 2 + h) * 4
                loads.append(f"buffer_load_dwordx4 v[{r}:{r+3}], v1, {srdn}, {so} offen offset:{imm} {kvflag}")
    a("s_cmp_lt_u32 s3, 12"); a("s_cbranch_scc1 L_nowo0")
    a("s_lshl_b32 s46, s60, 9"); a("s_lshl_b32 s97, s61, 4"); a("s_add_u32 s46, s46, s97"); a("s_mul_i32 s46, s46, 896")
    a("s_sub_u32 s97, s3, 12"); a("s_lshl_b32 s97, s97, 8"); a("s_add_u32 s46, s46, s97")
    a("v_lshrrev_b32 v4, 4, v0"); a("v_mul_u32_u24 v4, 3584, v4"); a("v_and_b32 v5, 15, v0"); a("v_lshlrev_b32 v5, 4, v5"); a("v_add_u32 v2, v4, v5")
    a.label("L_nowo0")
    if not qlate:
        a("s_and_b32 s97, s3, 0xb"); a("s_cmp_eq_u32 s97, 2"); a("s_cbranch_scc1 L_tok"); a("s_cmp_eq_u32 s97, 3"); a("s_cbranch_scc1 L_tok")
    else:
        a("s_lshl_b32 s97, 1, s3"); a("s_and_b32 s97, s97, 0x4d"); a("s_cbranch_scc1 L_tok")
    a("s_lshl_b32 s97, s3, 2"); a("v_mov_b32 v6, s97"); a("s_mov_b32 s98, 0")
    a.label("L_tokw")
    a(f"ds_read_b32 v7, v6 offset:{L_TOK}"); a("s_add_u32 s98, s98, 1"); a("s_waitcnt lgkmcnt(0)")
    a("v_cmp_ne_u32 vcc, 0, v7"); a("s_cbranch_vccnz L_tok")
    a(f"s_cmp_gt_u32 s98, {SPIN_MAX*8}"); a("s_cbranch_scc1 L_tok")
    a(f"s_sleep {toksleep}"); a("s_branch L_tokw")
    a.label("L_tok")
    a("s_cmp_lt_u32 s3, 12"); a("s_cbranch_scc0 L_last")
    if Deven is not None:
        a("s_bitcmp1_b32 s2, 0"); a("s_cbranch_scc1 L_isodd")
        for n, ld in enumerate(loads):
            if n >= Deven: a(f"s_waitcnt vmcnt({Deven-1})")
            a(ld)
        a(f"s_waitcnt vmcnt({RELeven if RELeven is not None else REL})")
        a("s_branch L_rel2")
        a.label("L_isodd")
    for n, ld in enumerate(loads):
        if n >= D: a(f"s_waitcnt vmcnt({D-1})")
        a(ld)
    a("s_branch L_rel")
    a.label("L_last")
    srd(40, sWO, 4096 * 896)
    if Dlast_even is not None:
        a("s_bitcmp1_b32 s2, 0"); a("s_cbranch_scc1 L_lastodd")
        for n, ld in enumerate(loads):
            if Dlast_even and n >= Dlast_even: a(f"s_waitcnt vmcnt({Dlast_even-1})")
            a(ld)
        a("s_branch L_lastwo")
        a.label("L_lastodd")
    for n, ld in enumerate(loads):
        if Dlast and n >= Dlast: a(f"s_waitcnt vmcnt({Dlast-1})")
        a(ld)
    if Dlast_even is not None: a.label("L_lastwo")
    for t in range(4):
        a(f"buffer_load_dwordx4 v[{WOR+4*t}:{WOR+4*t+3}], v2, s[40:43], s46 offen offset:{t*896} {wflag}")
    a("s_branch L_nowo")
    a.label("L_rel")
    a(f"s_waitcnt vmcnt({REL})")
    if Deven is not None: a.label("L_rel2")
    if not dynq:
        nxt = {2:4, 4:0, 0:12, 3:5, 5:1, 1:13, 6:10, 10:8, 8:14, 7:11, 11:9, 9:15}
        tab = sum(v << (4 * k) for k, v in nxt.items())
        a(f"s_mov_b32 s74, {tab & 0xffffffff:#x}"); a(f"s_mov_b32 s75, {tab >> 32:#x}"); a("s_lshl_b32 s97, s3, 2"); a("s_lshr_b64 s[74:75], s[74:75], s97")
        a("s_and_b32 s97, s74, 15"); a("s_lshl_b32 s97, s97, 2"); a("v_mov_b32 v6, s97"); a("v_mov_b32 v7, 1")
        a(f"ds_write_b32 v6, v7 offset:{L_TOK}")
    else:
        if qlate and order[4] == 0: order = (7, 4, 5, 10, 11, 1, 8, 9, 12, 13, 14, 15)
        tab = sum(v << (4 * k) for k, v in enumerate(order))
        a("v_mov_b32 v6, 0"); a("v_mov_b32 v7, 1"); a("s_mov_b64 s[96:97], exec"); a("s_mov_b64 exec, 1")
        a(f"ds_add_rtn_u32 v2, v6, v7 offset:{L_NEXT}")
        a(f"s_mov_b32 s74, {tab & 0xffffffff:#x}"); a(f"s_mov_b32 s75, {tab >> 32:#x}")
        a("s_waitcnt lgkmcnt(0)")
        a("v_readfirstlane_b32 s98, v2")
        a("s_lshl_b32 s98, s98, 2"); a("s_lshr_b64 s[74:75], s[74:75], s98"); a("s_and_b32 s98, s74, 15"); a("s_lshl_b32 s98, s98, 2"); a("v_mov_b32 v6, s98")
        a(f"ds_write_b32 v6, v7 offset:{L_TOK}")
        a("s_mov_b64 exec, s[96:97]")
    a.label("L_nowo")
    if qlate: a("s_cmp_eq_u32 s3, 0"); a("s_cbranch_scc1 L_qg2")
    a("s_cmp_lt_u32 s3, 2"); a("s_cbranch_scc1 L_havetags")
    a("s_waitcnt lgkmcnt(0)")
    make_tags()
    a.label("L_havetags")
    stamp(1)
    a.c("---- wait for q (LDS flag: 1 = device-scope hand-offs, 2 = all workgroups of this kv head on one XCD) ----")
    a("v_mov_b32 v2, 0"); a("s_mov_b32 s97, 0")
    a.label("L_qwait")
    a(f"ds_read_b32 v3, v2 offset:{L_FLAG}"); a("s_add_u32 s97, s97, 1"); a("s_waitcnt lgkmcnt(0)")
    a("v_cmp_ne_u32 vcc, 0, v3"); a("s_cbranch_vccnz L_qok")
    a(f"s_cmp_gt_u32 s97, {SPIN_MAX*8}"); a("s_cbranch_scc1 L_qok")
    a(f"s_sleep {qsleep}"); a("s_branch L_qwait")
    a.label("L_qok")
    a("v_readfirstlane_b32 s100, v3")
    a("v_and_b32 v4, 15, v0"); a("v_lshlrev_b32 v4, 4, v4")
    for h in range(2):
        for hf in range(2):
            r = QF + (h * 2 + hf) * 4
            a(f"ds_read_b128 v[{r}:{r+3}], v4 offset:{L_Q + h*512 + hf*256}")
    stamp(2)
    a("v_lshrrev_b32 v5, 5, v0"); a("v_lshlrev_b32 v5, 10, v5"); a("v_and_b32 v6, 15, v0"); a("v_lshlrev_b32 v6, 5, v6")
    a("v_bfe_u32 v7, v0, 4, 1"); a("v_lshlrev_b32 v7, 4, v7"); a("v_add3_u32 v5, v5, v6, v7")
    a(f"s_mul_i32 s96, s3, {OLS}"); a("v_add_u32 v5, s96, v5")
    a("v_and_b32 v6, 8, v0"); a("s_lshl_b32 s96, s3, 4"); a("v_add_u32 v6, s96, v6")
    a("v_and_b32 v7, 0x37, v0"); a("v_cmp_eq_u32 s[46:47], 0, v7")
    a.c("---- scores: lane = (key group g = l>>4, 8 dims at 8*(l&15)); dot2, then 16-lane reduction; online softmax per wave ----")
    ACC = 116
    a("s_cmp_lt_u32 s3, 12"); a("s_cbranch_scc1 L_kw0"); a("s_waitcnt vmcnt(12) lgkmcnt(0)"); a("s_branch L_kw1")
    a.label("L_kw0"); a("s_waitcnt vmcnt(8) lgkmcnt(0)"); a.label("L_kw1")
    for t in range(4):
        for hf in range(2):
            for r in range(4):
                for h in range(2):
                    kreg = KR + (t * 2 + hf) * 4 + r
                    qreg = QF + (h * 2 + hf) * 4 + r
                    acc = ACC + 2 * t + h
                    if hf == 0 and r == 0: a(f"v_dot2_f32_bf16 v{acc}, v{kreg}, v{qreg}, 0")
                    else: a(f"v_dot2c_f32_bf16 v{acc}, v{kreg}, v{qreg}")
    U, W = 124, KR
    for t in range(4): a(f"v_cndmask_b32 v{U+t}, v{ACC+2*t}, v{ACC+2*t+1}, {mB3}")
    for t in range(4): a(f"v_cndmask_b32 v{W+t}, v{ACC+2*t+1}, v{ACC+2*t}, {mB3}")
    for t in range(4): a(f"v_add_f32_dpp v{U+t}, v{W+t}, v{U+t} row_ror:8 {DPP}")
    for m in ("quad_perm:[1,0,3,2]", "quad_perm:[2,3,0,1]", "row_half_mirror"):
        for t in range(4): a(f"v_add_f32_dpp v{U+t}, v{U+t}, v{U+t} {m} {DPP}")
    for t in range(4): a(f"v_cvt_pk_bf16_f32 v{U+t}, v{U+t}, v{U+t}")
    for t in range(4): a(f"v_and_b32 v{U+t}, 0xffff0000, v{U+t}")
    MX, TMP = 116, 117
    a(f"v_max3_f32 v{MX}, v{U}, v{U+1}, v{U+2}"); a(f"v_max_f32 v{MX}, v{MX}, v{U+3}")
    a(f"v_mov_b32 v{TMP}, v{MX}"); a(f"v_permlane16_swap_b32 v{MX}, v{TMP}"); a(f"v_max_f32 v{MX}, v{MX}, v{TMP}")
    a(f"v_mov_b32 v{TMP}, v{MX}"); a(f"v_permlane32_swap_b32 v{MX}, v{TMP}"); a(f"v_max_f32 v{MX}, v{MX}, v{TMP}")
    a("s_mov_b32 s96, 0x3db8aa3b")
    for t in range(4): a(f"v_sub_f32 v{U+t}, v{U+t}, v{MX}")
    for t in range(4): a(f"v_mul_f32 v{U+t}, s96, v{U+t}")
    for t in range(4): a(f"v_exp_f32 v{U+t}, v{U+t}")
    AO = KR + 4
    for t in range(4): a(f"v_cvt_pk_bf16_f32 v{W+t}, v{U+t}, v{U+t}")
    LS = 117; T2 = 118
    a(f"v_add_f32 v{LS}, v{U}, v{U+1}"); a(f"v_add_f32 v{T2}, v{U+2}, v{U+3}")
    for t in range(4):
        for r in range(4): a(f"v_and_b32 v{AO+4*t+r}, v{W+t}, v{8+r}")
        if t == 0: a(f"v_add_f32 v{LS}, v{LS}, v{T2}")
        if t == 1: a(f"v_mov_b32 v{T2}, v{LS}")
        if t == 2: a(f"v_permlane16_swap_b32 v{LS}, v{T2}"); a(f"v_add_f32 v{LS}, v{LS}, v{T2}")
        if t == 3: a(f"v_mov_b32 v{T2}, v{LS}")
    a(f"v_permlane32_swap_b32 v{LS}, v{T2}"); a(f"v_add_f32 v{LS}, v{LS}, v{T2}")
    a.c("---- P*V: A = selector matrix with the probabilities, B = V rows as loaded ----")
    a("s_mov_b64 s[74:75], exec"); a("s_mov_b64 exec, s[46:47]")
    a(f"ds_write_b64 v6, v[{MX}:{LS}] offset:{L_ST}")
    a("s_mov_b64 exec, s[74:75]")
    for t in range(4):
        a(f"s_waitcnt vmcnt({12 - 2*(t+1)})")
        a("s_cmp_lt_u32 s3, 12"); a(f"s_cbranch_scc0 L_vw{t}")
        a(f"s_waitcnt vmcnt({8 - 2*(t+1)})")
        a.label(f"L_vw{t}")
        for hf in range(2):
            vr = VR + (t * 2 + hf) * 4
            d = 12 + 4 * hf
            c = "0" if t == 0 else f"v[{d}:{d+3}]"
            a(f"v_mfma_f32_16x16x32_bf16 v[{d}:{d+3}], v[{AO+4*t}:{AO+4*t+3}], v[{vr}:{vr+3}], {c}")
    a(f"ds_write_b128 v5, v[12:15] offset:{L_OL}")
    a(f"ds_write_b128 v5, v[16:19] offset:{L_OL + 512}")
    stamp(3)
    if not dynffn:
        a(f"s_cmp_eq_u32 s3, {fw}"); a("s_cbranch_scc0 L_ffn2_done"); a("s_cmp_lt_u32 s2, 224"); a("s_cbranch_scc0 L_ffn2_done")
        a("s_and_b32 s74, s2, 1"); a("s_cmp_eq_u32 s74, 0"); a("s_cbranch_scc1 L_ffn2")
    else:
        a(f"s_cmp_eq_u32 s3, {fw}"); a("s_cbranch_scc0 L_ffn2_done")
        a("s_mov_b32 s48, s24"); a("s_mov_b32 s49, s25"); a("s_mov_b32 s50, 256"); a("s_mov_b32 s51, 0x20000")
        a("v_mov_b32 v4, 1"); a("v_mov_b32 v7, 0"); a("s_mov_b64 s[74:75], exec"); a("s_mov_b64 exec, 1")
        a("buffer_atomic_add v4, v7, s[48:51], 0 offen sc0 sc1")
        a("s_waitcnt vmcnt(0)")
        a("v_readfirstlane_b32 s99, v4")
        a("s_mov_b64 exec, s[74:75]")
        a("s_cmp_lt_u32 s99, 112"); a("s_cbranch_scc1 L_ffn2")
    a.label("L_ffn2_done")
    if prewarm:
        a(f"s_cmp_eq_u32 s3, {prewarm}"); a("s_cbranch_scc0 L_nowarm"); a("s_cmp_eq_u32 s100, 2"); a("s_cbranch_scc0 L_nowarm")
        a("s_lshl_b32 s74, s60, 5"); a("s_add_u32 s74, s74, s61"); a(f"s_mul_i32 s74, s74, {R1}"); a(f"s_add_u32 s74, s74, {P1}")
        a("v_lshlrev_b32 v4, 4, v0")
        for i in range(4): a(f"buffer_load_dwordx4 v[{36+4*i}:{39+4*i}], v4, {WS}, s74 offen offset:{1024*i}")
        a.label("L_nowarm")
    a("s_sub_u32 s74, s3, 4"); a("s_cmp_lt_u32 s74, 4"); a("s_cbranch_scc0 L_bar2")
    a("v_and_b32 v4, 31, v0"); a("v_lshlrev_b32 v5, 4, v4"); a("v_lshrrev_b32 v6, 5, v0"); a(f"v_mul_u32_u24 v7, {8*OLS}, v6"); a("v_add_u32 v5, v5, v7")
    a("s_lshr_b32 s75, s74, 1"); a("s_lshl_b32 s96, s75, 10"); a("s_and_b32 s97, s74, 1"); a("s_lshl_b32 s97, s97, 9"); a("s_add_u32 s96, s96, s97"); a("v_add_u32 v5, s96, v5")
    a("v_lshlrev_b32 v7, 3, v6"); a("v_add_u32 v7, v7, v0"); a("v_and_b32 v7, 15, v7"); a("v_lshlrev_b32 v7, 4, v7"); a("s_lshl_b32 s96, s75, 3")
    a("v_lshlrev_b32 v3, 6, v6")
    a("v_add_u32 v6, s96, v7")
    a("v_lshrrev_b32 v7, 2, v4"); a(f"v_mul_u32_u24 v7, {R1}, v7"); a("v_and_b32 v4, 3, v0"); a("v_lshlrev_b32 v4, 4, v4"); a("v_add3_u32 v7, v7, v4, v3")
    a("s_lshl_b32 s75, s60, 5"); a("s_lshl_b32 s96, s74, 3"); a("s_add_u32 s75, s75, s96"); a(f"s_mul_i32 s75, s75, {R1}")
    a("s_lshr_b32 s96, s63, 2"); a("s_lshl_b32 s96, s96, 3"); a("s_lshl_b32 s97, s62, 2"); a("s_add_u32 s96, s96, s97"); a("s_and_b32 s97, s63, 3"); a("s_add_u32 s96, s96, s97")
    a("s_lshl_b32 s96, s96, 7"); a("s_add_u32 s75, s75, s96"); a(f"s_add_u32 s75, s75, {P1}")
    a("v_mov_b32 v33, 0xfffff000"); a("s_mov_b32 s96, 0x3db8aa3b")
    a("s_setprio 3")
    a.label("L_bar2")
    a("s_waitcnt lgkmcnt(0)")
    a("s_barrier")
    if x_endat == 1: a("s_branch L_exit")
    stamp(4)
    a("s_cmp_lt_u32 s74, 4"); a("s_cbranch_scc0 L_notcomb")
    a.c("---- waves 4..7: combine the 16 wave partials, publish one 128-byte line per consumer (P1) ----")
    a(f"ds_read_b64 v[28:29], v6 offset:{L_ST}")
    OR = 36
    for j8 in range(8): a(f"ds_read_b128 v[{OR+4*j8}:{OR+4*j8+3}], v5 offset:{L_OL + j8*OLS}")
    a("s_waitcnt lgkmcnt(8)")
    a("v_mov_b32 v34, v28")
    for m in ("row_ror:8", "row_ror:4", "row_ror:2", "row_ror:1"):
        a(f"v_max_f32_dpp v34, v34, v34 {m} {DPP}")
    a("v_sub_f32 v35, v28, v34"); a("v_mul_f32 v35, s96, v35"); a("v_exp_f32 v35, v35")
    a("v_mul_f32 v29, v35, v29")
    rors = ["row_ror:8", "row_ror:4", "row_ror:2", "row_ror:1"]
    for j8 in range(8):
        a(f"s_waitcnt lgkmcnt({7-j8})")
        for k in range(4):
            op = "v_mul_f32_dpp" if j8 == 0 else "v_fmac_f32_dpp"
            a(f"{op} v{20+k}, v35, v{OR+4*j8+k} row_newbcast:{j8} {DPP}")
        if j8 < 4: a(f"v_add_f32_dpp v29, v29, v29 {rors[j8]} {DPP}")
    for k in range(4): a(f"v_mov_b32 v{24+k}, v{20+k}")
    for k in range(4): a(f"v_permlane32_swap_b32 v{20+k}, v{24+k}")
    for k in range(4): a(f"v_add_f32 v{20+k}, v{20+k}, v{24+k}")
    a(f"v_cndmask_b32 v20, v34, v20, {mLO}"); a(f"v_cndmask_b32 v21, v29, v21, {mLO}"); a(f"v_cndmask_b32 v22, v34, v22, {mLO}"); a(f"v_cndmask_b32 v23, v29, v23, {mLO}")
    for k in range(4): a(f"v_and_or_b32 v{20+k}, v{20+k}, v33, {T[k]}")
    a("s_cmp_eq_u32 s100, 2"); a("s_cbranch_scc1 L_p1fast")
    a(f"buffer_store_dwordx4 v[20:23], v7, {WS}, s75 offen sc1")
    a("s_branch L_p1pub")
    a.label("L_p1fast")
    a(f"buffer_store_dwordx4 v[20:23], v7, {WS}, s75 offen")
    a.label("L_p1pub")
    lds_inc(L_PUBCNT)
    a("s_setprio 0")
    stamp(5)
    a("s_branch L_aux_done")
    a.label("L_notcomb")
    a("s_cmp_lt_u32 s3, 12"); a("s_cbranch_scc1 L_aux")

    a.c("---- waves 12..15: combine the 16 key splits for 16 rows of wo (both batches), project, publish P2 ----")
    if x_endat == 2: a("s_branch L_exit")
    a("s_setprio 3")
    GR = 36
    if ngw == 1:
        a("s_cmp_eq_u32 s3, 12"); a("s_cbranch_scc1 L_s2lead")
        pub_lane_addr("v5", "v6", "v7")
        a("s_sub_u32 s75, s3, 12"); a(f"s_mul_i32 s99, s75, {4*R2}"); a("s_lshl_b32 s97, s60, 5"); a("s_add_u32 s97, s97, s61"); a("s_lshl_b32 s97, s97, 7"); a("s_add_u32 s99, s99, s97"); a(f"s_add_u32 s99, s99, {P2}")
        a("v_bfe_u32 v7, v0, 3, 1"); a("v_lshlrev_b32 v7, 6, v7"); a("v_lshrrev_b32 v16, 4, v0"); a("v_lshlrev_b32 v16, 4, v16"); a("v_add_u32 v7, v7, v16")
        a("v_mov_b32 v33, 0xfffff000")
        a("s_cmp_eq_u32 s3, 15"); a("s_cselect_b32 s97, 8, 16"); a("v_and_b32 v20, 15, v0"); a("v_cmp_gt_u32 s[46:47], s97, v20")
        lds_wait_ge(L_S2FLAG, 1, "L_s2w")
        a("s_waitcnt vmcnt(0)")
        a("s_branch L_s2go")
        a.label("L_s2lead")
    a("s_lshl_b32 s74, s60, 5"); a("s_add_u32 s74, s74, s61"); a(f"s_mul_i32 s74, s74, {R1}"); a(f"s_add_u32 s74, s74, {P1}")
    a("v_lshlrev_b32 v4, 4, v0")
    a("s_mov_b32 s98, 0")
    if p1wait_f is None:
        a("s_cmp_eq_u32 s100, 2"); a("s_cbranch_scc1 L_p1df")
    lds_wait_ge(L_PUBCNT, 4, "L_pubw")
    if p1wait_f is not None:
        if p1wait_f: a(f"s_sleep {p1wait_f}")
        a("s_cmp_eq_u32 s100, 2"); a("s_cbranch_scc1 L_p1df")
    if p1delay:
        a.c("device-scope mode only: back-off until the write-through stores have landed")
        a(f"s_sleep {p1delay}")
    a.label("L_p1df")
    stamp(11)
    def p1ld():
        for i in range(4): a(f"buffer_load_dwordx4 v[{GR+4*i}:{GR+4*i+3}], v4, {WS}, s74 offen offset:{1024*i} sc1")
    p1ld()
    pub_lane_addr("v5", "v6", "v7")
    a("s_sub_u32 s75, s3, 12"); a(f"s_mul_i32 s99, s75, {4*R2}"); a("s_lshl_b32 s97, s60, 5"); a("s_add_u32 s97, s97, s61"); a("s_lshl_b32 s97, s97, 7"); a("s_add_u32 s99, s99, s97"); a(f"s_add_u32 s99, s99, {P2}")
    if ngw == 1:
        a("v_lshrrev_b32 v6, 5, v0"); a("v_lshlrev_b32 v6, 6, v6"); a("v_and_b32 v16, 7, v0"); a("v_lshlrev_b32 v16, 4, v16"); a("v_add_u32 v6, v6, v16")
        a("v_bfe_u32 v16, v0, 4, 1"); a("v_lshlrev_b32 v16, 2, v16"); a("v_add_u32 v6, v6, v16")
        a("v_bfe_u32 v7, v0, 3, 1"); a("v_lshlrev_b32 v7, 6, v7"); a("v_lshrrev_b32 v16, 4, v0"); a("v_lshlrev_b32 v16, 4, v16"); a("v_add_u32 v7, v7, v16")
    else:
        a("v_bfe_u32 v6, v0, 3, 1"); a("v_lshlrev_b32 v6, 7, v6"); a("v_lshrrev_b32 v16, 4, v0"); a("v_lshlrev_b32 v16, 2, v16"); a("v_add_u32 v6, v6, v16"); a("v_add_u32 v7, 64, v6")
    a("v_mov_b32 v33, 0xfffff000"); a("s_mov_b32 s96, 0x3db8aa3b")
    a("s_cmp_eq_u32 s3, 15"); a("s_cselect_b32 s97, 8, 16"); a("v_and_b32 v20, 15, v0"); a("v_cmp_gt_u32 s[46:47], s97, v20")
    a("s_branch L_p1chk")
    a.label("L_p1poll")
    a("s_cmp_eq_u32 s100, 2"); a("s_cbranch_scc1 L_p1rf")
    if p1retry: a(f"s_sleep {p1retry}")
    a.label("L_p1rf")
    p1ld()
    a.label("L_p1chk")
    a("s_add_u32 s98, s98, 1")
    a("s_waitcnt vmcnt(0)")
    untag(GR, 4)
    or_tree(range(GR, GR + 16), "v16")
    a("s_cbranch_vccz L_p1ok")
    if x_nop1: a("s_branch L_p1ok")
    a(f"s_cmp_gt_u32 s98, {SPIN_MAX}"); a("s_cbranch_scc0 L_p1poll")
    a.label("L_p1ok")
    stamp(6)
    if stamps: a("s_mov_b32 s101, s98")
    G = GR
    a(f"v_max3_f32 v16, v{G}, v{G+4}, v{G+8}"); a(f"v_max_f32 v16, v16, v{G+12}")
    a(f"v_max_f32_dpp v16, v16, v16 row_ror:8 {DPP}")
    a("v_mov_b32 v17, v16"); a("v_permlane16_swap_b32 v16, v17"); a("v_max_f32 v16, v16, v17")
    for i in range(4): a(f"v_sub_f32 v{20+i}, v{G+4*i}, v16")
    for i in range(4): a(f"v_mul_f32 v{20+i}, s96, v{20+i}")
    for i in range(4): a(f"v_exp_f32 v{20+i}, v{20+i}")
    a(f"v_mul_f32 v17, v20, v{G+1}")
    for i in range(1, 4): a(f"v_fmac_f32 v17, v{20+i}, v{G+4*i+1}")
    for t in range(4): a(f"v_mul_f32_dpp v{24+t}, v20, v{G+t} row_shl:4 {DPP}")
    a(f"v_add_f32_dpp v17, v17, v17 row_ror:8 {DPP}")
    for i in range(1, 4):
        for t in range(4): a(f"v_fmac_f32_dpp v{24+t}, v{20+i}, v{G+4*i+t} row_shl:4 {DPP}")
        if i == 1: a("v_mov_b32 v18, v17")
        if i == 2: a("v_permlane16_swap_b32 v17, v18"); a("v_add_f32 v17, v17, v18")
        if i == 3: a("v_rcp_f32 v17, v17")
    for t in range(4): a(f"v_add_f32_dpp v{24+t}, v{24+t}, v{24+t} row_ror:8 {DPP}")
    a("v_permlane16_swap_b32 v24, v25"); a("v_permlane16_swap_b32 v26, v27")
    a("v_add_f32 v24, v24, v25"); a("v_add_f32 v26, v26, v27")
    a(f"v_mul_f32_dpp v24, v17, v24 row_shl:4 {DPP}"); a(f"v_mul_f32_dpp v26, v17, v26 row_shl:4 {DPP}")
    a("v_cvt_pk_bf16_f32 v24, v24, v24"); a("v_cvt_pk_bf16_f32 v26, v26, v26")
    if ngw == 1:
        a("v_and_b32 v16, 15, v0"); a("v_cmp_gt_u32 vcc, 4, v16"); a("s_and_saveexec_b64 s[74:75], vcc")
        a(f"ds_write_b32 v6, v24 offset:{L_S2}"); a(f"ds_write_b32 v6, v26 offset:{L_S2+8}")
        a("s_mov_b64 exec, s[74:75]")
        a("s_waitcnt lgkmcnt(0)")
        a("v_mov_b32 v2, 0"); a("v_mov_b32 v3, 1"); a(f"ds_write_b32 v2, v3 offset:{L_S2FLAG}")
        a.label("L_s2go")
        a(f"ds_read_b128 v[20:23], v7 offset:{L_S2}")
        a("s_waitcnt lgkmcnt(0)")
    else:
        a("ds_bpermute_b32 v20, v6, v24"); a("ds_bpermute_b32 v21, v7, v24"); a("ds_bpermute_b32 v22, v6, v26"); a("ds_bpermute_b32 v23, v7, v26")
    AR = 68
    for t in range(4):
        if ngw != 1: a(f"s_waitcnt lgkmcnt({3-t})")
        for r in range(4): a(f"v_and_b32 v{AR+4*t+r}, v{20+t}, v{8+r}")
        c = "0" if t == 0 else "v[12:15]"
        a(f"v_mfma_f32_16x16x32_bf16 v[12:15], v[{AR+4*t}:{AR+4*t+3}], v[{WOR+4*t}:{WOR+4*t+3}], {c}")
    for i in range(4): a(f"v_and_or_b32 v{16+i}, v{12+i}, v33, {T[i]}")
    a("s_mov_b64 s[74:75], exec"); a("s_mov_b64 exec, s[46:47]")
    a(f"buffer_store_dwordx4 v[16:19], v5, {WS}, s99 offen sc1")
    a("s_mov_b64 exec, s[74:75]")
    lds_inc(L_P2CNT)
    a("s_setprio 0")
    stamp(7)
    a("s_branch L_aux_done")

    a.label("L_aux")
    a.c("---- FFN partial publish; final-reduction workgroups gather the FFN rows and form silu(y) ----")
    a(f"s_cmp_eq_u32 s3, {fw}"); a("s_cbranch_scc0 L_ygather")
    if not dynffn:
        a("s_cmp_lt_u32 s2, 224"); a("s_cbranch_scc0 L_aux_done")
        a("s_and_b32 s74, s2, 1"); a("s_cmp_eq_u32 s74, 0"); a("s_cbranch_scc0 L_aux_done")
        pub_lane_addr("v4", "v6", "v7")
        a("s_lshr_b32 s74, s2, 1"); a("s_lshl_b32 s74, s74, 7"); a(f"s_add_u32 s74, s74, {YP}")
    else:
        a("s_cmp_lt_u32 s99, 112"); a("s_cbranch_scc0 L_aux_done")
        pub_lane_addr("v4", "v6", "v7")
        a("s_lshl_b32 s74, s99, 7"); a(f"s_add_u32 s74, s74, {YP}")
    for c in range(4):
        if c == 3:
            a("v_and_b32 v5, 15, v0"); a("v_cmp_gt_u32 vcc, 8, v5"); a("s_and_saveexec_b64 s[96:97], vcc")
        a(f"buffer_store_dwordx4 v[{100+4*c}:{103+4*c}], v4, {WS}, s74 offen sc1")
        if c == 3: a("s_mov_b64 exec, s[96:97]")
        else: a(f"s_add_u32 s74, s74, {4*R2}")
    a("s_branch L_aux_done")

    a.label("L_ygather")
    if x_endat >= 2: a("s_branch L_exit")
    a("s_cmp_lt_u32 s2, 28"); a("s_cbranch_scc0 L_exit")
    if fw == 1:
        a("s_sub_u32 s75, s3, 1"); a("s_cmp_eq_u32 s3, 0"); a("s_cselect_b32 s75, 0, s75")
    elif fw == 2:
        a("s_cmp_eq_u32 s3, 3"); a("s_cselect_b32 s75, 2, s3")
    else:
        a("s_mov_b32 s75, s3")
    a("s_sub_u32 s74, s3, 5"); a("s_cmp_ge_u32 s3, 8"); a("s_cselect_b32 s75, s74, s75")
    a(f"s_mul_i32 s74, s2, {R2}"); a("s_lshl_b32 s96, s75, 11"); a("s_add_u32 s74, s74, s96"); a(f"s_add_u32 s74, s74, {YP}")
    a("v_lshlrev_b32 v4, 4, v0"); a("s_mov_b32 s98, 0")
    col_addr("v5", "v6"); a("s_lshl_b32 s75, s75, 7"); a("v_add_u32 v5, s75, v5")
    lds_wait_ge(L_PUBCNT, 4, "L_ypw", 2)
    if p1delay:
        a.c("back-off until the write-through stores have landed")
        a(f"s_sleep {p1delay}")
    a.label("L_ypoll")
    for i in range(2): a(f"buffer_load_dwordx4 v[{36+4*i}:{39+4*i}], v4, {WS}, s74 offen offset:{1024*i} sc1")
    a("s_add_u32 s98, s98, 1"); a("s_waitcnt vmcnt(0)")
    untag(36, 2)
    or_tree(range(36, 44), "v16")
    a("s_cbranch_vccz L_yok")
    a(f"s_sleep {max(p1retry, 8)}")
    a(f"s_cmp_gt_u32 s98, {SPIN_MAX}"); a("s_cbranch_scc0 L_ypoll")
    a.label("L_yok")
    for k in range(4): a(f"v_add_f32 v{36+k}, v{36+k}, v{40+k}")
    reduce4(36)
    a("v_and_b32 v6, 8, v0"); a("v_cmp_eq_u32 vcc, 0, v6"); a("s_and_saveexec_b64 s[74:75], vcc")
    a(f"ds_write_b32 v5, v36 offset:{L_YR}")
    a("s_mov_b64 exec, s[74:75]")
    a("s_waitcnt lgkmcnt(0)")
    lds_inc(L_YCNT)
    a("s_cmp_eq_u32 s3, 0"); a("s_cbranch_scc0 L_final")
    a("s_mul_hi_u32 s74, s2, 0x12492493")
    a("s_mul_i32 s75, s74, 14"); a("s_sub_u32 s75, s2, s75")
    a("s_mul_i32 s74, s74, 896"); a("s_lshl_b32 s75, s75, 6"); a("s_add_u32 s99, s74, s75")
    a("v_and_b32 v50, 31, v0"); a("v_lshlrev_b32 v51, 1, v50")
    a(f"buffer_load_ushort v52, v51, {XS}, s99 offen")
    if outwarm: a(f"buffer_load_ushort v56, v51, {OUT}, s99 offen")
    lds_wait_ge(L_YCNT, 7, "L_ywait")
    a("v_lshlrev_b32 v53, 2, v50")
    for k in range(7): a(f"ds_read_b32 v{36+k}, v53 offset:{L_YR + 128*k}")
    a("s_waitcnt lgkmcnt(0)")
    a("v_add_f32 v36, v36, v37"); a("v_add_f32 v38, v38, v39"); a("v_add_f32 v40, v40, v41"); a("v_add_f32 v36, v36, v42")
    a("v_add_f32 v36, v36, v38"); a("v_add_f32 v36, v36, v40")
    a("v_cvt_pk_bf16_f32 v36, v36, v36"); a("v_and_b32 v36, 0xffff0000, v36")
    a("v_mul_f32 v37, 0xbfb8aa3b, v36"); a("v_exp_f32 v37, v37"); a("v_add_f32 v37, 1.0, v37"); a("v_rcp_f32 v37, v37"); a("v_mul_f32 v37, v36, v37")
    a("v_cvt_pk_bf16_f32 v37, v37, v37"); a("v_and_b32 v54, 0xffff0000, v37")
    a("s_waitcnt vmcnt(0)"); a("v_lshlrev_b32 v52, 16, v52")
    a("v_lshrrev_b32 v55, 5, v0"); a("v_lshlrev_b32 v55, 10, v55"); a("v_add_u32 v55, v55, v53")
    a("s_branch L_final")

    a.label("L_aux_done")
    if x_endat >= 2: a("s_branch L_exit")
    a("s_cmp_lt_u32 s2, 28"); a("s_cbranch_scc0 L_exit")
    a.label("L_final")
    a.c("---- final reduction of 32 output columns over the 256 P2 rows, epilogue x + s*g ----")
    a(f"s_mul_i32 s74, s2, {R2}"); a("s_lshl_b32 s75, s3, 11"); a("s_add_u32 s74, s74, s75"); a(f"s_add_u32 s74, s74, {P2}")
    a("v_lshlrev_b32 v4, 4, v0"); a("s_mov_b32 s98, 0")
    col_addr("v5", "v6"); a("s_lshl_b32 s75, s3, 7"); a("v_add_u32 v5, s75, v5")
    a("v_and_b32 v6, 8, v0"); a("v_cmp_eq_u32 s[46:47], 0, v6")
    lds_wait_ge(L_P2CNT, 4, "L_p2w", 1)
    if stamps:
        a("s_cmp_lt_u32 s3, 2"); a("s_cbranch_scc1 L_nost"); a("s_cmp_eq_u32 s3, 12"); a("s_cbranch_scc1 L_nost")
        stamp(11)
        a.label("L_nost")
    a.label("L_fpoll")
    for i in range(2): a(f"buffer_load_dwordx4 v[{36+4*i}:{39+4*i}], v4, {WS}, s74 offen offset:{1024*i} sc1")
    a("s_add_u32 s98, s98, 1"); a("s_waitcnt vmcnt(0)")
    untag(36, 2)
    or_tree(range(36, 44), "v16")
    a("s_cbranch_vccz L_fok")
    if x_nop2: a("s_branch L_fok")
    a(f"s_cmp_gt_u32 s98, {SPIN_MAX}"); a("s_cbranch_scc0 L_fpoll")
    a.label("L_fok")
    stamp(8)
    if stamps:
        a("s_cmp_eq_u32 s3, 12"); a("s_cselect_b32 s101, s101, s98")
    for k in range(4): a(f"v_add_f32 v{36+k}, v{36+k}, v{40+k}")
    reduce4(36)
    a("s_mov_b64 s[74:75], exec"); a("s_mov_b64 exec, s[46:47]")
    a(f"ds_write_b32 v5, v36 offset:{L_SR}")
    a("s_mov_b64 exec, s[74:75]")
    a("s_waitcnt lgkmcnt(0)")
    a("s_barrier")
    a("s_cmp_eq_u32 s3, 0"); a("s_cbranch_scc1 L_epi")
    a("s_cmp_eq_u32 s3, 1"); a("s_cbranch_scc0 L_exit"); a("s_cmp_eq_u32 s2, 0"); a("s_cbranch_scc0 L_exit")
    a("s_mov_b64 exec, 1")
    a("v_mov_b32 v4, s68"); a("v_mov_b32 v5, s69"); a("v_mov_b32 v6, 0")
    a(f"buffer_store_dwordx2 v[4:5], v6, {WS}, 0 offen")
    a("s_branch L_exit")
    a.label("L_epi")
    for k in range(8): a(f"ds_read_b32 v{36+k}, v55 offset:{L_SR + 128*k}")
    a("s_waitcnt lgkmcnt(4)")
    a("v_add_f32 v36, v36, v37"); a("v_add_f32 v38, v38, v39")
    a("s_waitcnt lgkmcnt(0)")
    a("v_add_f32 v40, v40, v41"); a("v_add_f32 v42, v42, v43")
    a("v_add_f32 v36, v36, v38"); a("v_add_f32 v40, v40, v42"); a("v_add_f32 v36, v36, v40")
    a("v_mov_b32 v37, v36"); a("v_permlane32_swap_b32 v36, v37"); a("v_add_f32 v36, v36, v37")
    a("v_cvt_pk_bf16_f32 v36, v36, v36"); a("v_and_b32 v36, 0xffff0000, v36")
    a("v_mul_f32 v36, v36, v54"); a("v_cvt_pk_bf16_f32 v36, v36, v36"); a("v_and_b32 v36, 0xffff0000, v36")
    a("v_add_f32 v36, v52, v36"); a("v_cvt_pk_bf16_f32 v36, v36, v36")
    a(f"s_mov_b64 exec, {mLO}")
    a(f"buffer_store_short v36, v51, {OUT}, s99 offen {outflag}")
    a("s_branch L_exit")

    a.label("L_ffn2")
    a.c("---- second FFN stage: gelu(gate)*up for 16 columns, times 16 rows of w_down ----")
    a("s_waitcnt lgkmcnt(0)")
    srd(48, sWD, 1792 * 896)
    if dynffn: a("s_mov_b32 s75, s99")
    else: a("s_lshr_b32 s75, s2, 1")
    a(f"s_mul_i32 s74, s75, {16*896}")
    a("v_lshrrev_b32 v6, 2, v0"); a("v_mul_u32_u24 v6, 7168, v6"); a("v_and_b32 v5, 3, v0"); a("v_lshlrev_b32 v5, 4, v5"); a("v_add_u32 v6, v6, v5")
    a("s_lshl_b32 s75, s75, 6"); a(f"s_add_u32 s75, s75, {FP}"); a("s_mov_b32 s98, 0")
    G_, U_, X_, HV = 100, 104, 108, 112
    a(f"buffer_load_dwordx4 v[{G_}:{G_+3}], v6, {WS}, s75 offen sc1")
    a("v_lshrrev_b32 v4, 4, v0"); a("v_mul_u32_u24 v4, 3584, v4"); a("v_and_b32 v5, 15, v0"); a("v_lshlrev_b32 v5, 4, v5"); a("v_add_u32 v4, v4, v5")
    WD16 = lambda t, c: 36 + (t * 4 + c) * 4
    for t in range(4):
        for c in range(4):
            r = WD16(t, c)
            a(f"buffer_load_dwordx4 v[{r}:{r+3}], v4, {WD}, s74 offen offset:{t*896 + c*256} {wflag}")
    a("s_waitcnt vmcnt(16)")
    a("s_branch L_fchk")
    a.label("L_fpoll2")
    if retry_sleep: a(f"s_sleep {retry_sleep}")
    a(f"buffer_load_dwordx4 v[{G_}:{G_+3}], v6, {WS}, s75 offen sc1")
    a("s_waitcnt vmcnt(0)")
    a.label("L_fchk")
    a("s_add_u32 s98, s98, 1")
    untag(G_, 1)
    or_tree(range(G_, G_ + 4), "v16")
    a("s_cbranch_vccz L_fgot")
    a(f"s_cmp_gt_u32 s98, {SPIN_MAX}"); a("s_cbranch_scc0 L_fpoll2")
    a.label("L_fgot")
    for k in range(4): a(f"v_add_f32_dpp v{G_+k}, v{G_+k}, v{G_+k} row_ror:8 {DPP}")
    for k in range(4): a(f"v_mov_b32 v{U_+k}, v{G_+k}")
    for k in range(4): a(f"v_permlane16_swap_b32 v{G_+k}, v{U_+k}")
    for k in range(4): a(f"v_add_f32 v{G_+k}, v{G_+k}, v{U_+k}")
    for k in range(4): a(f"v_mov_b32 v{U_+k}, v{G_+k}")
    for k in range(4): a(f"v_permlane32_swap_b32 v{G_+k}, v{U_+k}")
    for k in range(4): a(f"v_cvt_pk_bf16_f32 v{G_+k}, v{G_+k}, v{U_+k}")
    for k in range(4):
        a(f"v_and_b32 v{U_+k}, 0xffff0000, v{G_+k}"); a(f"v_lshlrev_b32 v{G_+k}, 16, v{G_+k}")
    a("s_mov_b32 s96, 0x3d372713"); a("s_mov_b32 s97, 0xc0135761")
    for k in range(4): a(f"v_mul_f32 v{X_+k}, v{G_+k}, v{G_+k}")
    for k in range(4): a(f"v_fma_f32 v{X_+k}, v{X_+k}, s96, 1.0")
    for k in range(4): a(f"v_mul_f32 v{X_+k}, v{X_+k}, v{G_+k}")
    for k in range(4): a(f"v_mul_f32 v{X_+k}, s97, v{X_+k}")
    for k in range(4): a(f"v_exp_f32 v{X_+k}, v{X_+k}")
    for k in range(4): a(f"v_add_f32 v{X_+k}, 1.0, v{X_+k}")
    for k in range(4): a(f"v_rcp_f32 v{X_+k}, v{X_+k}")
    for k in range(4): a(f"v_mul_f32 v{X_+k}, v{X_+k}, v{G_+k}")
    for k in range(4): a(f"v_cvt_pk_bf16_f32 v{X_+k}, v{X_+k}, v{X_+k}")
    for k in range(4): a(f"v_and_b32 v{X_+k}, 0xffff0000, v{X_+k}")
    for k in range(4): a(f"v_mul_f32 v{X_+k}, v{X_+k}, v{U_+k}")
    for k in range(4): a(f"v_cvt_pk_bf16_f32 v{X_+k}, v{X_+k}, v{X_+k}")
    a("v_lshlrev_b32 v5, 4, v0"); a("v_cmp_gt_u32 vcc, 8, v0"); a("s_and_saveexec_b64 s[96:97], vcc")
    a(f"ds_write_b128 v5, v[{X_}:{X_+3}] offset:{L_HD}")
    a("s_mov_b64 exec, s[96:97]")
    a("v_bfe_u32 v5, v0, 3, 1"); a("v_lshlrev_b32 v5, 6, v5"); a("v_lshrrev_b32 v7, 4, v0"); a("v_lshlrev_b32 v7, 4, v7"); a("v_add_u32 v5, v5, v7")
    a("s_waitcnt lgkmcnt(0)")
    a(f"ds_read_b128 v[{HV}:{HV+3}], v5 offset:{L_HD}")
    a("v_mov_b32 v116, 0xfffff000")
    a("s_waitcnt lgkmcnt(0) vmcnt(0)")
    for t in range(4):
        for r in range(4): a(f"v_and_b32 v{20+4*t+r}, v{HV+t}, v{8+r}")
    for half in range(2):
        for cc in range(2):
            c = 2 * half + cc
            for t in range(4):
                r = WD16(t, c)
                src = "0" if t == 0 else f"v[{12+4*cc}:{15+4*cc}]"
                a(f"v_mfma_f32_16x16x32_bf16 v[{12+4*cc}:{15+4*cc}], v[{20+4*t}:{23+4*t}], v[{r}:{r+3}], {src}")
        for cc in range(2):
            c = 2 * half + cc
            for k in range(4): a(f"v_and_or_b32 v{100+4*c+k}, v{12+4*cc+k}, v116, {T[k]}")
    stamp(11)
    a("s_branch L_ffn2_done")

    a.label("L_exit")
    if stamps:
        a("s_memrealtime s[96:97]")
        a("s_waitcnt lgkmcnt(0)")
        a("s_lshl_b32 s74, s2, 4"); a("s_add_u32 s74, s74, s3"); a("s_lshl_b32 s74, s74, 6"); a(f"s_add_u32 s74, s74, {STAMP}")
        a("s_mov_b64 exec, 1")
        a("v_mov_b32 v4, 0")
        for k in range(10): a(f"v_mov_b32 v{20+k}, s{76+2*k}")
        a("v_mov_b32 v30, s96"); a("s_getreg_b32 s75, hwreg(HW_REG_XCC_ID)"); a("v_mov_b32 v31, s75")
        a("v_mov_b32 v32, s101"); a(f"buffer_store_dword v32, v4, {WS}, s74 offen offset:48")
        for q in range(3):
            a(f"buffer_store_dwordx4 v[{20+4*q}:{23+4*q}], v4, {WS}, s74 offen offset:{16*q}")
    a.label("L_end")
    a("s_endpgm")
    a.label("L_codeend")

    head = [
        "; Fused decode step:  out = x + attn(LN(x)) * silu(ffn(LN(x)))   (GQA sliding window of 4096 keys, GEGLU FFN)",
        ";",
        "; One launch, 256 workgroups (one per CU) x 16 waves.  Workgroup id = r*8 + kvh, r = batch*16 + split:",
        ";   it owns 256 keys of kv head kvh of one batch; each wave streams 16 keys of K and V into registers.",
        ";   wave 0: LayerNorm + a 112x64 tile of wq -> q partials -> gathers q for its two heads into LDS",
        ";   wave 1: LayerNorm + a 112x64 tile of w_gate / w_up -> FFN partials;  wave 3: GEGLU + 16 rows of w_down",
        ";   all   : scores (dot2), online softmax, P*V (MFMA with a selector operand), partials in LDS",
        ";   waves 4-7 : workgroup combine -> P1;  waves 12-15: split combine + 16 rows of wo -> P2",
        ";   workgroups 0-27: final reduction over the 256 P2 rows and the 112 FFN rows, epilogue.",
        "; Hand-offs between workgroups go through d_ws as 16-byte granules whose low 12 bits per dword carry a",
        "; per-launch tag (derived from a generation word kept in d_ws); readers poll until the tags match.",
        "; When all workgroups of a kv head report the same XCD, the P1 hand-off stays in that XCD's L2,",
        "; otherwise it uses device-scope stores.",
        f"; @launch grid=(256,1,1) block=(1024,1,1) lds={LDS_BYTES}",
        '.amdgcn_target "amdgcn-amd-amdhsa--gfx950"',
        ".text", f".globl {KNAME}", ".p2align 8", f".type {KNAME},@function", f"{KNAME}:"]
    tail = ['.section .rodata,"a"', ".p2align 6", f".amdhsa_kernel {KNAME}",
            "  .amdhsa_next_free_vgpr 128", "  .amdhsa_next_free_sgpr 102", "  .amdhsa_accum_offset 128",
            "  .amdhsa_group_segment_fixed_size 0", "  .amdhsa_kernarg_size 96", "  .amdhsa_user_sgpr_count 2",
            "  .amdhsa_user_sgpr_kernarg_segment_ptr 1", "  .amdhsa_system_sgpr_workgroup_id_x 1", ".end_amdhsa_kernel"]
    return "\n".join(head) + "\n" + a.text() + "\n".join(tail) + "\n"

if __name__ == "__main__":
    print(gen(), end="")
```

```python
import sys
sys.path.insert(0, "gen")
from asmlib import Asm

KNAME = "recurrent_scan__sliding_block_cached__geglu_ffn__decode_kernel"

XID = 0x200
PARW = 0x100
QP = 0x1000
FP = 0x21000
P1 = 0x40000
P2 = 0x150000
YP = 0x240000
STAMP = 0x400000
R1 = 4224
R2 = 32896
WS_BYTES = 0x40000000

L_FLAG = 0
L_YCNT = 4
L_PUBCNT = 8
L_P2CNT = 12
L_NEXT = 16
L_S2FLAG = 20
L_S2 = 3392
L_TOK = 64
L_Q = 128
L_XD = 1216
L_HD = 3008
L_ST = 3136
L_SR = 3904
L_YR = 5952
L_OL = 6976
OLS = 2064
LDS_BYTES = L_OL + 16 * OLS

DPP = "row_mask:0xf bank_mask:0xf"
SPIN_MAX = 200000

def gen(stamps=False, kvflag="nt", wflag="nt", D=8, REL=7, qdelay=55, retry_sleep=16, qsleep=2, p1delay=32, p1retry=16,
        codepf=True, rot=(1, 0, 0), ln1=True, dynq=True, Dlast=12, perm=False, Deven=None, RELeven=None, Dlast_even=None, tlbwarm=False, fw=3, ilv=None, toksleep=1, prewarm=0, p1wait_f=None, outwarm=False, dynffn=False, ngw=4, qlate=False, x_qplain=False, cen=True, qdelay_f=25, adpar=True, x_par=None, outflag="", x_nop1=False, x_nop2=False, x_endat=0, order=(4, 5, 10, 11, 0, 1, 8, 9, 12, 13, 14, 15)):
    a = Asm()
    sX, sK, sV, sWQ, sWO, sWG, sWU, sWD, sOUT, sDBG, sWSp = 4, 6, 8, 10, 12, 16, 18, 20, 22, 24, 26
    K, V, WS, TILE, WD, XS, OUT = "s[28:31]", "s[32:35]", "s[36:39]", "s[40:43]", "s[48:51]", "s[52:55]", "s[56:59]"
    T = ["s64", "s65", "s66", "s67"]
    mB3, mLO = "s[70:71]", "s[72:73]"
    KR, VR, WOR, QF = 36, 68, 100, 20

    def stamp(k):
        if stamps:
            k = {9: 6, 10: 7, 11: 9}.get(k, k)
            a(f"s_memrealtime s[{76+2*k}:{77+2*k}]")
    def srd(n, ptr, size):
        a(f"s_mov_b32 s{n}, s{ptr}"); a(f"s_mov_b32 s{n+1}, s{ptr+1}"); a(f"s_mov_b32 s{n+2}, {size:#x}"); a(f"s_mov_b32 s{n+3}, 0x20000")
    def ids():
        a("s_and_b32 s60, s2, 7"); a("s_lshr_b32 s61, s2, 3"); a("s_lshr_b32 s62, s61, 4"); a("s_and_b32 s63, s61, 15")
    def lane_consts():
        a("v_and_b32 v4, 8, v0"); a(f"v_cmp_ne_u32 {mB3}, 0, v4")
        a(f"v_cmp_gt_u32 {mLO}, 32, v0")
        a("v_and_b32 v4, 7, v0"); a("v_and_b32 v5, 1, v0"); a("v_cmp_eq_u32 vcc, 1, v5")
        a("v_mov_b32 v6, 0xffff"); a("v_mov_b32 v7, 0xffff0000"); a("v_cndmask_b32 v6, v6, v7, vcc")
        a("v_lshrrev_b32 v4, 1, v4")
        for r in range(4):
            a(f"v_cmp_eq_u32 vcc, {r}, v4"); a(f"v_cndmask_b32 v{8+r}, 0, v6, vcc")
        a("v_lshrrev_b32 v4, 4, v0"); a("v_lshlrev_b32 v4, 9, v4"); a("v_and_b32 v5, 15, v0"); a("v_lshlrev_b32 v5, 4, v5"); a("v_add_u32 v1, v4, v5")
        if ilv is None:
            a("s_mov_b32 s74, s3")
            for coef, reg in zip(rot, ("s63", "s60", "s62")):
                if coef == 1: a(f"s_add_u32 s74, s74, {reg}")
                elif coef: a(f"s_mul_i32 s75, {reg}, {coef}"); a("s_add_u32 s74, s74, s75")
            a("s_and_b32 s74, s74, 15")
            a("s_lshl_b32 s75, s62, 3"); a("s_add_u32 s75, s75, s60"); a("s_lshl_b32 s75, s75, 24"); a("s_add_u32 s75, s75, 0xE00000")
            a("s_lshl_b32 s46, s63, 17"); a("s_add_u32 s75, s75, s46"); a("s_lshl_b32 s74, s74, 13"); a("s_add_u32 s44, s74, s75")
            a("s_add_u32 s45, s44, 4096")
        else:
            grp = {2:(0,0), 3:(0,1), 6:(0,2), 7:(0,3), 4:(1,0), 5:(1,1), 10:(1,2), 11:(1,3), 0:(2,0), 1:(2,1), 8:(2,2), 9:(2,3), 12:(3,0), 13:(3,1), 14:(3,2), 15:(3,3)}
            tab = sum((g * 4 + j) << (4 * w) for w, (g, j) in grp.items())
            a(f"s_mov_b32 s74, {tab & 0xffffffff:#x}"); a(f"s_mov_b32 s75, {tab >> 32:#x}"); a("s_lshl_b32 s46, s3, 2"); a("s_lshr_b64 s[74:75], s[74:75], s46")
            a("s_and_b32 s46, s74, 3")
            a("s_lshr_b32 s74, s74, 2"); a("s_and_b32 s74, s74, 3")
            cg, cj, ck = ilv
            if cg: a(f"s_mul_i32 s75, s63, {cg}"); a("s_add_u32 s74, s74, s75")
            if ck: a(f"s_mul_i32 s75, s60, {ck}"); a("s_add_u32 s74, s74, s75")
            a("s_and_b32 s74, s74, 3")
            if cj: a("s_lshr_b32 s75, s63, 2"); a(f"s_mul_i32 s75, s75, {cj}"); a("s_add_u32 s46, s46, s75"); a("s_and_b32 s46, s46, 3")
            a("s_lshl_b32 s74, s74, 15"); a("s_lshl_b32 s46, s46, 11"); a("s_add_u32 s74, s74, s46")
            a("s_lshl_b32 s75, s62, 3"); a("s_add_u32 s75, s75, s60"); a("s_lshl_b32 s75, s75, 24"); a("s_add_u32 s75, s75, 0xE00000")
            a("s_lshl_b32 s46, s63, 17"); a("s_add_u32 s75, s75, s46"); a("s_add_u32 s44, s74, s75")
            a("s_add_u32 s45, s44, 8192")
    def late_srds():
        srd(28, sK, 0x10000000); srd(32, sV, 0x10000000); srd(56, sOUT, 1792)
    def make_tags():
        a("s_add_u32 s68, s68, 1"); a("s_addc_u32 s69, s69, 0")
        a("s_mul_i32 s96, s68, 0x7f4a7c15"); a("s_mul_hi_u32 s97, s68, 0x7f4a7c15")
        a("s_mul_i32 s75, s68, 0x9e3779b9"); a("s_add_u32 s97, s97, s75")
        a("s_mul_i32 s75, s69, 0x7f4a7c15"); a("s_add_u32 s97, s97, s75")
        a("s_and_b32 s64, s96, 0xfff"); a("s_bfe_u32 s65, s96, 0xc000c")
        a("s_lshr_b32 s66, s96, 24"); a("s_lshl_b32 s75, s97, 8"); a("s_or_b32 s66, s66, s75"); a("s_and_b32 s66, s66, 0xfff")
        a("s_bfe_u32 s67, s97, 0xc0004")
    def lds_wait_ge(addr, val, lab, sleep=0):
        a("v_mov_b32 v2, 0"); a("s_mov_b32 s97, 0")
        a.label(lab)
        a(f"ds_read_b32 v3, v2 offset:{addr}"); a("s_add_u32 s97, s97, 1"); a("s_waitcnt lgkmcnt(0)")
        a(f"v_cmp_le_u32 vcc, {val}, v3"); a(f"s_cbranch_vccnz {lab}_ok")
        if sleep: a(f"s_sleep {sleep}")
        a(f"s_cmp_gt_u32 s97, {SPIN_MAX*8}"); a(f"s_cbranch_scc0 {lab}")
        a.label(lab + "_ok")
    def lds_inc(addr):
        a("v_mov_b32 v2, 0"); a("v_mov_b32 v3, 1"); a("s_mov_b64 s[96:97], exec"); a("s_mov_b64 exec, 1")
        a(f"ds_add_u32 v2, v3 offset:{addr}")
        a("s_mov_b64 exec, s[96:97]")
    def or_tree(regs, dst):
        regs = list(regs)
        a(f"v_or3_b32 {dst}, v{regs[0]}, v{regs[1]}, v{regs[2]}"); regs = regs[3:]
        while len(regs) >= 2:
            a(f"v_or3_b32 {dst}, {dst}, v{regs[0]}, v{regs[1]}"); regs = regs[2:]
        if regs: a(f"v_or_b32 {dst}, {dst}, v{regs[0]}")
        a(f"v_and_b32 {dst}, 0xfff, {dst}"); a(f"v_cmp_ne_u32 vcc, 0, {dst}")
    def untag(base, n):
        for i in range(n):
            for k in range(4): a(f"v_xor_b32 v{base+4*i+k}, {T[k]}, v{base+4*i+k}")
    def pub_lane_addr(dst, t1, t2):
        a(f"v_lshrrev_b32 {t1}, 5, v0"); a(f"v_mul_u32_u24 {t1}, 14, {t1}"); a(f"v_bfe_u32 {t2}, v0, 2, 2"); a(f"v_add_u32 {t1}, {t1}, {t2}")
        a(f"v_mul_u32_u24 {dst}, {R2}, {t1}")
        a(f"v_and_b32 {t1}, 3, v0"); a(f"v_lshlrev_b32 {t1}, 5, {t1}"); a(f"v_bfe_u32 {t2}, v0, 4, 1"); a(f"v_lshlrev_b32 {t2}, 4, {t2}")
        a(f"v_add3_u32 {dst}, {dst}, {t1}, {t2}")
    def reduce4(base):
        for k in range(4): a(f"v_add_f32_dpp v{base+k}, v{base+k}, v{base+k} row_ror:8 {DPP}")
        a(f"v_permlane16_swap_b32 v{base}, v{base+1}"); a(f"v_permlane16_swap_b32 v{base+2}, v{base+3}")
        a(f"v_add_f32 v{base}, v{base}, v{base+1}"); a(f"v_add_f32 v{base+2}, v{base+2}, v{base+3}")
        a(f"v_permlane32_swap_b32 v{base}, v{base+2}"); a(f"v_add_f32 v{base}, v{base}, v{base+2}")
    def col_addr(dst, t1):
        a(f"v_and_b32 {dst}, 7, v0"); a(f"v_lshlrev_b32 {dst}, 4, {dst}"); a(f"v_lshrrev_b32 {t1}, 5, v0"); a(f"v_lshlrev_b32 {t1}, 3, {t1}"); a(f"v_add_u32 {dst}, {dst}, {t1}")
        a(f"v_bfe_u32 {t1}, v0, 4, 1"); a(f"v_lshlrev_b32 {t1}, 2, {t1}"); a(f"v_add_u32 {dst}, {dst}, {t1}")

    a.c("---- entry: extra workgroups leave; s3 = wave, v0 = lane; flags/tokens in LDS are zeroed ----")
    a("s_cmp_ge_u32 s2, 256"); a("s_cbranch_scc1 L_end")
    if perm:
        a("s_mul_i32 s2, s2, 37"); a("s_add_u32 s2, s2, 11"); a("s_and_b32 s2, s2, 255")
    a("s_load_dwordx16 s[4:19], s[0:1], 0")
    a("s_load_dwordx8 s[20:27], s[0:1], 64")
    stamp(0)
    a("v_lshrrev_b32 v1, 6, v0"); a("v_and_b32 v0, 63, v0")
    a("v_lshlrev_b32 v2, 1, v0"); a("v_mov_b32 v3, 0")
    a("v_readfirstlane_b32 s3, v1")
    a("v_and_b32 v2, 0x7c, v2")
    a("ds_write_b32 v2, v3")
    a("s_cmp_lt_u32 s3, 2"); a("s_cbranch_scc0 L_dpro")

    a.c("---- control waves: wave 0 = wq tile (rows 112*rb.., 64 columns), wave 1 = w_gate/w_up tile ----")
    a("s_setprio 3")
    ids()
    a("s_cmp_eq_u32 s3, 0"); a("s_cbranch_scc0 L_ctrl1")
    a("s_lshr_b32 s74, s61, 3"); a("s_and_b32 s75, s61, 7")
    a(f"s_mul_i32 s96, s74, {112*8192}"); a("s_lshl_b32 s97, s60, 10"); a("s_add_u32 s96, s96, s97"); a("s_lshl_b32 s97, s75, 7"); a("s_add_u32 s96, s96, s97")
    a("s_lshl_b32 s98, s60, 3"); a("s_add_u32 s98, s98, s74"); a("s_lshl_b32 s98, s98, 11")
    a("s_lshl_b32 s99, s75, 8"); a("s_add_u32 s98, s98, s99"); a(f"s_add_u32 s98, s98, {QP}")
    a("s_mov_b32 s99, 8192"); a("s_mov_b32 s97, 8192"); a(f"s_mov_b32 s42, {448*8192:#x}")
    a("s_waitcnt lgkmcnt(0)")
    a("s_mov_b32 s40, s10"); a("s_mov_b32 s41, s11")
    a("s_branch L_tile")
    a.label("L_ctrl1")
    a("s_lshr_b32 s47, s2, 1"); a("s_and_b32 s75, s2, 1"); a("s_lshl_b32 s75, s75, 7"); a("s_add_u32 s47, s47, s75")
    a("s_cmp_lt_u32 s47, 224"); a("s_cbranch_scc0 L_notile")
    a("s_lshr_b32 s75, s47, 1"); a("s_mul_i32 s74, s75, 4682"); a("s_lshr_b32 s74, s74, 17")
    a("s_mul_i32 s96, s74, 28"); a("s_sub_u32 s75, s75, s96")
    a(f"s_mul_i32 s96, s74, {112*3584}"); a("s_lshl_b32 s97, s75, 7"); a("s_add_u32 s96, s96, s97")
    a("s_and_b32 s99, s47, 1")
    a("s_lshl_b32 s98, s99, 2"); a("s_add_u32 s98, s98, s74"); a("s_mul_i32 s98, s98, 14336")
    a("s_lshl_b32 s97, s75, 8"); a("s_add_u32 s98, s98, s97"); a(f"s_add_u32 s98, s98, {FP}")
    a(f"s_mov_b32 s42, {448*3584:#x}")
    a("s_cmp_eq_u32 s99, 0")
    a("s_waitcnt lgkmcnt(0)")
    a("s_cselect_b32 s40, s16, s18"); a("s_cselect_b32 s41, s17, s19")
    a("s_mov_b32 s97, 3584"); a("s_mov_b32 s99, 7168")
    a.label("L_tile")
    a("s_mov_b32 s43, 0x20000")
    srd(52, sX, 1792)
    TR = 40
    a("v_lshrrev_b32 v4, 3, v0"); a("v_mul_lo_u32 v4, s97, v4"); a("v_and_b32 v5, 7, v0"); a("v_lshlrev_b32 v5, 4, v5"); a("v_add_u32 v4, v4, v5")
    a("v_and_b32 v6, 31, v0"); a("v_lshrrev_b32 v7, 5, v0"); a("v_mul_u32_u24 v7, 896, v7"); a("v_lshlrev_b32 v5, 5, v6"); a("v_add_u32 v5, v5, v7")
    a("v_cmp_gt_u32 vcc, 28, v6"); a("v_mov_b32 v7, 0x10000"); a("v_cndmask_b32 v5, v7, v5, vcc")
    a(f"buffer_load_dwordx4 v[20:23], v5, {XS}, 0 offen"); a(f"buffer_load_dwordx4 v[24:27], v5, {XS}, 0 offen offset:16")
    a("s_mul_i32 s75, s74, 224"); a("v_lshlrev_b32 v6, 2, v0"); a("v_cmp_gt_u32 vcc, 56, v0"); a("v_cndmask_b32 v6, v7, v6, vcc")
    a(f"buffer_load_dword v28, v6, {XS}, s75 offen"); a(f"buffer_load_dword v29, v6, {XS}, s75 offen offset:896")
    a("s_lshl_b32 s97, s97, 3")
    for t in range(14):
        a(f"buffer_load_dwordx4 v[{TR+4*t}:{TR+4*t+3}], v4, {TILE}, s96 offen {wflag}")
        if t < 13: a("s_add_u32 s96, s96, s97")
    a("s_load_dwordx2 s[68:69], s[26:27], 0")
    a("s_barrier")
    stamp(9)
    if cen:
        a.c("census in d_debug (zero at launch): byte [kvh*32 + r] = 0x80 | XCD id, written through this XCD's L2 only")
        srd(48, sDBG, 256)
        a("s_getreg_b32 s46, hwreg(HW_REG_XCC_ID)"); a("s_and_b32 s46, s46, 15"); a("s_or_b32 s46, s46, 0x80")
        a("s_lshl_b32 s47, s60, 5")
        a("s_cmp_eq_u32 s3, 0"); a("s_cbranch_scc0 L_nocen")
        a("v_mov_b32 v5, s46"); a("v_mov_b32 v7, s61"); a("s_mov_b64 exec, 1")
        a("buffer_store_byte v5, v7, s[48:51], s47 offen")
        a("s_mov_b64 exec, -1")
        a.label("L_nocen")
    srd(36, sWSp, WS_BYTES)
    late_srds()
    lane_consts()
    a("s_waitcnt lgkmcnt(0)")
    make_tags()
    a.c("---- LayerNorm statistics (lanes < 32: batch 0, lanes >= 32: batch 1), rounded like the bf16 reference ----")
    a("s_mov_b32 s74, 0x3f803f80")
    a("s_waitcnt vmcnt(16)")
    if cen:
        a("s_lshl_b32 s47, s60, 5"); a("v_and_b32 v5, 31, v0"); a("buffer_load_ubyte v36, v5, s[48:51], s47 offen sc1")
    a("v_dot2_f32_bf16 v30, v20, s74, 0"); a("v_dot2_f32_bf16 v31, v20, v20, 0")
    for j in range(1, 8):
        a(f"v_dot2c_f32_bf16 v30, s74, v{20+j}"); a(f"v_dot2c_f32_bf16 v31, v{20+j}, v{20+j}")
    for m in ("row_ror:8", "row_ror:4", "row_ror:2", "row_ror:1"):
        a(f"v_add_f32_dpp v30, v30, v30 {m} {DPP}"); a(f"v_add_f32_dpp v31, v31, v31 {m} {DPP}")
    a("v_mov_b32 v32, v30"); a("v_mov_b32 v33, v31")
    a("v_permlane16_swap_b32 v30, v32"); a("v_permlane16_swap_b32 v31, v33")
    a("v_add_f32 v30, v30, v32"); a("v_add_f32 v31, v31, v33")
    a("v_mul_f32 v30, 0x3b124925, v30")
    a("v_mul_f32 v31, 0x3b124925, v31")
    a("v_fma_f32 v31, -v30, v30, v31"); a("v_max_f32 v31, 0, v31")
    a("v_cvt_pk_bf16_f32 v31, v31, v30")
    a("v_and_b32 v30, 0xffff0000, v31")
    a("v_lshlrev_b32 v31, 16, v31")
    a("v_add_f32 v31, 0x3727c5ac, v31"); a("v_cvt_pk_bf16_f32 v31, v31, v31"); a("v_and_b32 v31, 0xffff0000, v31")
    a("v_sqrt_f32 v31, v31"); a("v_cvt_pk_bf16_f32 v31, v31, v31"); a("v_and_b32 v31, 0xffff0000, v31")
    a("v_rcp_f32 v31, v31")
    a("v_readlane_b32 s74, v30, 0"); a("v_readlane_b32 s75, v30, 32"); a("v_readlane_b32 s96, v31, 0"); a("v_readlane_b32 s97, v31, 32")
    a(f"s_waitcnt vmcnt({15 if cen else 14})")
    for b in range(2):
        a(f"v_lshlrev_b32 v{96+2*b}, 16, v{28+b}"); a(f"v_and_b32 v{97+2*b}, 0xffff0000, v{28+b}")
    for b in range(2):
        a(f"v_subrev_f32 v{96+2*b}, s{74+b}, v{96+2*b}"); a(f"v_subrev_f32 v{97+2*b}, s{74+b}, v{97+2*b}")
    for b in range(2): a(f"v_cvt_pk_bf16_f32 v{100+b}, v{96+2*b}, v{97+2*b}")
    for b in range(2):
        a(f"v_lshlrev_b32 v{96+2*b}, 16, v{100+b}"); a(f"v_and_b32 v{97+2*b}, 0xffff0000, v{100+b}")
    for b in range(2):
        a(f"v_mul_f32 v{96+2*b}, s{96+b}, v{96+2*b}"); a(f"v_mul_f32 v{97+2*b}, s{96+b}, v{97+2*b}")
    for j in range(4): a(f"v_cvt_pk_bf16_f32 v{96+j}, v{96+j}, v{96+j}")
    a("s_mul_i32 s74, s3, 896"); a("v_lshlrev_b32 v6, 3, v0"); a("v_add_u32 v6, s74, v6")
    a("v_cmp_gt_u32 vcc, 56, v0"); a("s_and_saveexec_b64 s[96:97], vcc")
    a(f"ds_write_b64 v6, v[96:97] offset:{L_XD}"); a(f"ds_write_b64 v6, v[98:99] offset:{L_XD+448}")
    a("s_mov_b64 exec, s[96:97]")
    a("v_lshrrev_b32 v6, 3, v0"); a("v_lshlrev_b32 v6, 2, v6"); a("v_add_u32 v6, s74, v6")
    a("s_waitcnt lgkmcnt(0)")
    a.c("---- tile GEMV: B = weight rows as loaded, A = selector matrix carrying xn ----")
    XV = 96
    for t in range(7):
        for b in range(2): a(f"ds_read_b32 v{XV+2*t+b}, v6 offset:{L_XD + b*448 + t*32}")
    a("v_lshrrev_b32 v4, 5, v0"); a("v_mul_lo_u32 v4, s99, v4"); a("v_and_b32 v5, 7, v0"); a("v_lshlrev_b32 v5, 5, v5"); a("v_bfe_u32 v7, v0, 4, 1"); a("v_lshlrev_b32 v7, 4, v7")
    a("v_add3_u32 v4, v4, v5, v7")
    a("s_waitcnt lgkmcnt(0)")
    for t in range(7, 14):
        for b in range(2): a(f"ds_read_b32 v{XV+2*t+b}, v6 offset:{L_XD + b*448 + t*32}")
    for t in range(14):
        A0 = 20 + 8 * (t & 1)
        if t == 7: a("s_waitcnt lgkmcnt(0)")
        for b in range(2):
            for r in range(4): a(f"v_and_b32 v{A0+4*b+r}, v{XV+2*t+b}, v{8+r}")
        a(f"s_waitcnt vmcnt({13-t+(1 if cen else 0)})")
        for b in range(2):
            d = 12 + 4 * b
            c = "0" if t == 0 else f"v[{d}:{d+3}]"
            a(f"v_mfma_f32_16x16x32_bf16 v[{d}:{d+3}], v[{A0+4*b}:{A0+4*b+3}], v[{TR+4*t}:{TR+4*t+3}], {c}")
    a("v_mov_b32 v33, 0xfffff000")
    a("v_bfe_u32 v5, v0, 3, 1"); a("v_lshrrev_b32 v7, 5, v0"); a("v_cmp_eq_u32 vcc, v5, v7")
    for k in range(4):
        a(f"v_mov_b32_dpp v{20+k}, v{12+k} row_ror:8 {DPP}"); a(f"v_mov_b32_dpp v{24+k}, v{16+k} row_ror:8 {DPP}")
    for k in range(4): a(f"v_permlane32_swap_b32 v{20+k}, v{24+k}")
    for k in range(4):
        a(f"v_cndmask_b32 v{28+k}, v{16+k}, v{12+k}, {mLO}"); a(f"v_cndmask_b32 v{20+k}, v{20+k}, v{24+k}, {mLO}")
    for k in range(4): a(f"v_add_f32 v{28+k}, v{28+k}, v{20+k}")
    for k in range(4): a(f"v_and_or_b32 v{28+k}, v{28+k}, v33, {T[k]}")
    if cen:
        a("s_mov_b64 s[74:75], vcc")
        a("s_getreg_b32 s46, hwreg(HW_REG_XCC_ID)"); a("s_and_b32 s46, s46, 15"); a("s_or_b32 s46, s46, 0x80")
        a("s_waitcnt vmcnt(0)")
        a("v_cmp_ne_u32 vcc, s46, v36"); a("s_cmp_eq_u64 vcc, 0"); a("s_cselect_b32 s47, 2, 1"); a("s_cmp_eq_u32 s3, 0"); a("s_cselect_b32 s47, s47, 1")
        a("s_mov_b64 vcc, s[74:75]")
    a("s_and_saveexec_b64 s[96:97], vcc")
    if cen:
        a("s_cmp_eq_u32 s47, 2"); a("s_cbranch_scc0 L_qp1")
        a(f"buffer_store_dwordx4 v[28:31], v4, {WS}, s98 offen")
        a("s_branch L_qp2")
        a.label("L_qp1")
    a(f"buffer_store_dwordx4 v[28:31], v4, {WS}, s98 offen sc1")
    if cen: a.label("L_qp2")
    a("s_mov_b64 exec, s[96:97]")
    a("s_cmp_eq_u32 s3, 0"); a("s_cbranch_scc1 L_qg")
    stamp(10)
    a("s_setprio 0")
    a("s_branch L_kv")
    a.label("L_qg")
    a.c("---- wave 0: publish this workgroup's XCD id, then gather the q partials of its (batch, kv head) ----")
    if not cen:
        a("s_getreg_b32 s46, hwreg(HW_REG_XCC_ID)"); a("s_and_b32 s46, s46, 15")
        a("s_lshl_b32 s47, s65, 12"); a("s_or_b32 s47, s47, s64")
        a("s_lshl_b32 s96, s46, 24"); a("s_or_b32 s96, s96, s47")
        a("s_lshl_b32 s97, s60, 7"); a("s_lshl_b32 s75, s61, 2"); a("s_add_u32 s75, s75, s97"); a(f"s_add_u32 s75, s75, {XID}")
        a("v_mov_b32 v5, s96"); a("v_mov_b32 v7, 0"); a("s_mov_b64 s[98:99], exec"); a("s_mov_b64 exec, 1")
        a(f"buffer_store_dword v5, v7, {WS}, s75 offen {'' if x_qplain else 'sc1'}")
        a("s_mov_b64 exec, s[98:99]")
    if adpar:
        a.c("workgroup 0 tells everybody the parity of its XCD (odd XCDs stream slower; the movable FFN work goes to the even ones)")
        a("s_cmp_eq_u32 s2, 0"); a("s_cbranch_scc0 L_nopar")
        a("s_getreg_b32 s96, hwreg(HW_REG_XCC_ID)"); a("s_and_b32 s96, s96, 1")
        if x_par is not None: a(f"s_mov_b32 s96, {x_par}")
        a("s_lshl_b32 s96, s96, 24"); a("s_lshl_b32 s97, s65, 12"); a("s_or_b32 s96, s96, s97"); a("s_or_b32 s96, s96, s64")
        a("v_mov_b32 v5, s96"); a("v_mov_b32 v7, 0"); a("s_mov_b64 s[98:99], exec"); a("s_mov_b64 exec, 1")
        a(f"buffer_store_dword v5, v7, {WS}, 0 offen offset:{PARW} sc1")
        a("s_mov_b64 exec, s[98:99]")
        a.label("L_nopar")
    stamp(10)
    if qlate:
        a("s_setprio 0"); a("s_branch L_kv")
        a.label("L_qg2")
        a("s_setprio 3"); a("s_lshl_b32 s97, s60, 7")
    a("s_lshl_b32 s74, s60, 1"); a("s_add_u32 s74, s74, s62"); a("s_lshl_b32 s74, s74, 13"); a(f"s_add_u32 s74, s74, {QP}"); a("s_add_u32 s75, s74, 4096")
    a("v_lshlrev_b32 v4, 4, v0"); a("s_mov_b32 s98, 0")
    QG = [100 + 4 * i for i in range(7)] + [20]
    if not cen:
        a("v_and_b32 v5, 31, v0"); a("v_lshlrev_b32 v5, 2, v5"); a(f"s_add_u32 s96, s97, {XID}")
    else:
        a("v_and_b32 v5, 31, v0"); a("s_lshl_b32 s96, s60, 5")
    if qdelay and not qlate:
        a.c("back-off: the partials of the 32 producers need about this long to land; a read that races a write stalls the CU's load queue")
        if cen:
            a("s_cmp_eq_u32 s47, 2"); a("s_cbranch_scc0 L_qds")
            if qdelay_f: a(f"s_sleep {qdelay_f}")
            a("s_branch L_qdd")
            a.label("L_qds")
        a(f"s_sleep {qdelay}")
        if cen: a.label("L_qdd")
    a.label("L_qpoll")
    for i in range(8):
        so = "s74" if i < 4 else "s75"
        a(f"buffer_load_dwordx4 v[{QG[i]}:{QG[i]+3}], v4, {WS}, {so} offen offset:{1024*(i&3)} sc1")
    if not cen: a(f"buffer_load_dword v28, v5, {WS}, s96 offen sc1")
    else: a("buffer_load_ubyte v28, v5, s[48:51], s96 offen sc1")
    a("s_add_u32 s98, s98, 1"); a("s_waitcnt vmcnt(0)")
    for i in range(8):
        for k in range(4): a(f"v_xor_b32 v{QG[i]+k}, {T[k]}, v{QG[i]+k}")
    if not cen: a("v_xor_b32 v29, s47, v28"); a("v_and_b32 v29, 0xffffff, v29"); a("v_min_u32 v29, 1, v29")
    or_tree([QG[i] + k for i in range(8) for k in range(4)] + ([] if cen else [29]), "v16")
    a("s_cbranch_vccz L_qgot")
    if retry_sleep: a(f"s_sleep {retry_sleep}")
    a(f"s_cmp_gt_u32 s98, {SPIN_MAX}"); a("s_cbranch_scc0 L_qpoll")
    a.label("L_qgot")
    for h in range(2):
        for k in range(4):
            a(f"v_add_f32 v{QG[h]+k}, v{QG[h]+k}, v{QG[2+h]+k}"); a(f"v_add_f32 v{QG[4+h]+k}, v{QG[4+h]+k}, v{QG[6+h]+k}")
    for h in range(2):
        for k in range(4): a(f"v_add_f32 v{QG[h]+k}, v{QG[h]+k}, v{QG[4+h]+k}")
    for h in range(2):
        a(f"v_cvt_pk_bf16_f32 v{24+2*h}, v{QG[h]}, v{QG[h]+1}"); a(f"v_cvt_pk_bf16_f32 v{25+2*h}, v{QG[h]+2}, v{QG[h]+3}")
    a("v_lshlrev_b32 v4, 3, v0")
    a(f"ds_write_b64 v4, v[24:25] offset:{L_Q}"); a(f"ds_write_b64 v4, v[26:27] offset:{L_Q+512}")
    if not cen: a("v_lshrrev_b32 v28, 24, v28")
    a("v_cmp_ne_u32 vcc, s46, v28"); a("s_cmp_eq_u64 vcc, 0"); a("s_cselect_b32 s96, 2, 1")
    a("s_waitcnt lgkmcnt(0)")
    a("v_mov_b32 v4, 0"); a("v_mov_b32 v5, s96")
    a(f"ds_write_b32 v4, v5 offset:{L_FLAG}")
    stamp(11)
    a("s_setprio 0")
    a("s_branch L_havetags" if qlate else "s_branch L_kv")
    a.label("L_notile")
    a("s_waitcnt lgkmcnt(0)")
    a("s_load_dwordx2 s[68:69], s[26:27], 0")
    a("s_barrier")
    srd(36, sWSp, WS_BYTES); srd(52, sX, 1792)
    late_srds()
    lane_consts()
    a("s_waitcnt lgkmcnt(0)")
    make_tags()
    a("s_setprio 0")
    a("s_branch L_kv")

    a.label("L_dpro")
    a.c("---- data waves: prologue ----")
    ids()
    lane_consts()
    for n, size in ((28, 0x10000000), (32, 0x10000000), (36, WS_BYTES), (52, 1792), (56, 1792)):
        a(f"s_mov_b32 s{n+2}, {size:#x}"); a(f"s_mov_b32 s{n+3}, 0x20000")
    a("s_waitcnt lgkmcnt(0)")
    for n, ptr in ((28, sK), (32, sV), (36, sWSp), (52, sX), (56, sOUT)):
        a(f"s_mov_b32 s{n}, s{ptr}"); a(f"s_mov_b32 s{n+1}, s{ptr+1}")
    a("s_load_dwordx2 s[68:69], s[26:27], 0")
    a("s_barrier")
    if codepf:
        a("s_cmp_eq_u32 s3, 15"); a("s_cbranch_scc0 L_nopf")
        a("s_getpc_b64 s[96:97]")
        a.label("L_pc")
        a(f"s_sub_u32 s96, s96, L_pc-{KNAME}"); a("s_subb_u32 s97, s97, 0")
        a("s_lshr_b32 s74, s2, 3"); a("s_mul_i32 s74, s74, 384"); a("v_lshlrev_b32 v4, 6, v0"); a("v_add_u32 v4, s74, v4")
        a("v_cmp_gt_u32 s[74:75], 6, v0"); a(f"v_cmp_gt_u32 vcc, L_codeend-{KNAME}, v4"); a("s_and_b64 vcc, vcc, s[74:75]")
        a("s_and_saveexec_b64 s[74:75], vcc")
        a("s_cbranch_execz L_pfskip")
        a("global_load_dword v36, v4, s[96:97]")
        a.label("L_pfskip")
        a("s_mov_b64 exec, s[74:75]")
        a.label("L_nopf")

    if tlbwarm:
        a("s_cmp_eq_u32 s3, 14"); a("s_cbranch_scc0 L_notlb")
        a("v_cmp_gt_u32 vcc, 28, v0"); a(f"v_mul_u32_u24 v4, {R2}, v0"); a("v_mov_b32 v5, 0"); a("v_cndmask_b32 v4, v5, v4, vcc")
        a(f"s_mov_b32 s74, {P2 + 32768}"); a(f"buffer_load_dword v36, v4, {WS}, s74 offen")
        a(f"s_mov_b32 s74, {YP + 32768}"); a(f"buffer_load_dword v37, v4, {WS}, s74 offen")
        a("v_and_b32 v4, 31, v0"); a(f"v_mul_u32_u24 v4, {R1}, v4"); a("s_lshl_b32 s74, s60, 5"); a(f"s_mul_i32 s74, s74, {R1}"); a(f"s_add_u32 s74, s74, {P1 + 4096}")
        a(f"buffer_load_dword v38, v4, {WS}, s74 offen")
        a.label("L_notlb")

    a.label("L_kv")
    a.c("---- K/V issue: four tokens circulate through the waves so that about 32 KB stay in flight per CU ----")
    if ilv is not None: a("s_add_u32 s14, s44, 16384"); a("s_add_u32 s15, s44, 24576")
    loads = []
    for (base, srdn) in ((KR, K), (VR, V)):
        for t in range(4):
            for h in range(2):
                if ilv is None:
                    so = "s44" if t < 2 else "s45"
                    imm = (t & 1) * 2048 + h * 256
                else:
                    so = ("s44", "s45", "s14", "s15")[t]
                    imm = h * 256
                r = base + (t * 2 + h) * 4
                loads.append(f"buffer_load_dwordx4 v[{r}:{r+3}], v1, {srdn}, {so} offen offset:{imm} {kvflag}")
    a("s_cmp_lt_u32 s3, 12"); a("s_cbranch_scc1 L_nowo0")
    a("s_lshl_b32 s46, s60, 9"); a("s_lshl_b32 s97, s61, 4"); a("s_add_u32 s46, s46, s97"); a("s_mul_i32 s46, s46, 896")
    a("s_sub_u32 s97, s3, 12"); a("s_lshl_b32 s97, s97, 8"); a("s_add_u32 s46, s46, s97")
    a("v_lshrrev_b32 v4, 4, v0"); a("v_mul_u32_u24 v4, 3584, v4"); a("v_and_b32 v5, 15, v0"); a("v_lshlrev_b32 v5, 4, v5"); a("v_add_u32 v2, v4, v5")
    a.label("L_nowo0")
    if not qlate:
        a("s_and_b32 s97, s3, 0xb"); a("s_cmp_eq_u32 s97, 2"); a("s_cbranch_scc1 L_tok"); a("s_cmp_eq_u32 s97, 3"); a("s_cbranch_scc1 L_tok")
    else:
        a("s_lshl_b32 s97, 1, s3"); a("s_and_b32 s97, s97, 0x4d"); a("s_cbranch_scc1 L_tok")
    a("s_lshl_b32 s97, s3, 2"); a("v_mov_b32 v6, s97"); a("s_mov_b32 s98, 0")
    a.label("L_tokw")
    a(f"ds_read_b32 v7, v6 offset:{L_TOK}"); a("s_add_u32 s98, s98, 1"); a("s_waitcnt lgkmcnt(0)")
    a("v_cmp_ne_u32 vcc, 0, v7"); a("s_cbranch_vccnz L_tok")
    a(f"s_cmp_gt_u32 s98, {SPIN_MAX*8}"); a("s_cbranch_scc1 L_tok")
    a(f"s_sleep {toksleep}"); a("s_branch L_tokw")
    a.label("L_tok")
    a("s_cmp_lt_u32 s3, 12"); a("s_cbranch_scc0 L_last")
    if Deven is not None:
        a("s_bitcmp1_b32 s2, 0"); a("s_cbranch_scc1 L_isodd")
        for n, ld in enumerate(loads):
            if n >= Deven: a(f"s_waitcnt vmcnt({Deven-1})")
            a(ld)
        a(f"s_waitcnt vmcnt({RELeven if RELeven is not None else REL})")
        a("s_branch L_rel2")
        a.label("L_isodd")
    for n, ld in enumerate(loads):
        if n >= D: a(f"s_waitcnt vmcnt({D-1})")
        a(ld)
    a("s_branch L_rel")
    a.label("L_last")
    srd(40, sWO, 4096 * 896)
    if Dlast_even is not None:
        a("s_bitcmp1_b32 s2, 0"); a("s_cbranch_scc1 L_lastodd")
        for n, ld in enumerate(loads):
            if Dlast_even and n >= Dlast_even: a(f"s_waitcnt vmcnt({Dlast_even-1})")
            a(ld)
        a("s_branch L_lastwo")
        a.label("L_lastodd")
    for n, ld in enumerate(loads):
        if Dlast and n >= Dlast: a(f"s_waitcnt vmcnt({Dlast-1})")
        a(ld)
    if Dlast_even is not None: a.label("L_lastwo")
    for t in range(4):
        a(f"buffer_load_dwordx4 v[{WOR+4*t}:{WOR+4*t+3}], v2, s[40:43], s46 offen offset:{t*896} {wflag}")
    a("s_branch L_nowo")
    a.label("L_rel")
    a(f"s_waitcnt vmcnt({REL})")
    if Deven is not None: a.label("L_rel2")
    if not dynq:
        nxt = {2:4, 4:0, 0:12, 3:5, 5:1, 1:13, 6:10, 10:8, 8:14, 7:11, 11:9, 9:15}
        tab = sum(v << (4 * k) for k, v in nxt.items())
        a(f"s_mov_b32 s74, {tab & 0xffffffff:#x}"); a(f"s_mov_b32 s75, {tab >> 32:#x}"); a("s_lshl_b32 s97, s3, 2"); a("s_lshr_b64 s[74:75], s[74:75], s97")
        a("s_and_b32 s97, s74, 15"); a("s_lshl_b32 s97, s97, 2"); a("v_mov_b32 v6, s97"); a("v_mov_b32 v7, 1")
        a(f"ds_write_b32 v6, v7 offset:{L_TOK}")
    else:
        if qlate and order[4] == 0: order = (7, 4, 5, 10, 11, 1, 8, 9, 12, 13, 14, 15)
        tab = sum(v << (4 * k) for k, v in enumerate(order))
        a("v_mov_b32 v6, 0"); a("v_mov_b32 v7, 1"); a("s_mov_b64 s[96:97], exec"); a("s_mov_b64 exec, 1")
        a(f"ds_add_rtn_u32 v2, v6, v7 offset:{L_NEXT}")
        a(f"s_mov_b32 s74, {tab & 0xffffffff:#x}"); a(f"s_mov_b32 s75, {tab >> 32:#x}")
        a("s_waitcnt lgkmcnt(0)")
        a("v_readfirstlane_b32 s98, v2")
        a("s_lshl_b32 s98, s98, 2"); a("s_lshr_b64 s[74:75], s[74:75], s98"); a("s_and_b32 s98, s74, 15"); a("s_lshl_b32 s98, s98, 2"); a("v_mov_b32 v6, s98")
        a(f"ds_write_b32 v6, v7 offset:{L_TOK}")
        a("s_mov_b64 exec, s[96:97]")
    a.label("L_nowo")
    if qlate: a("s_cmp_eq_u32 s3, 0"); a("s_cbranch_scc1 L_qg2")
    a("s_cmp_lt_u32 s3, 2"); a("s_cbranch_scc1 L_havetags")
    a("s_waitcnt lgkmcnt(0)")
    make_tags()
    a.label("L_havetags")
    stamp(1)
    a.c("---- wait for q (LDS flag: 1 = device-scope hand-offs, 2 = all workgroups of this kv head on one XCD) ----")
    a("v_mov_b32 v2, 0"); a("s_mov_b32 s97, 0")
    a.label("L_qwait")
    a(f"ds_read_b32 v3, v2 offset:{L_FLAG}"); a("s_add_u32 s97, s97, 1"); a("s_waitcnt lgkmcnt(0)")
    a("v_cmp_ne_u32 vcc, 0, v3"); a("s_cbranch_vccnz L_qok")
    a(f"s_cmp_gt_u32 s97, {SPIN_MAX*8}"); a("s_cbranch_scc1 L_qok")
    a(f"s_sleep {qsleep}"); a("s_branch L_qwait")
    a.label("L_qok")
    a("v_readfirstlane_b32 s100, v3")
    a("v_and_b32 v4, 15, v0"); a("v_lshlrev_b32 v4, 4, v4")
    for h in range(2):
        for hf in range(2):
            r = QF + (h * 2 + hf) * 4
            a(f"ds_read_b128 v[{r}:{r+3}], v4 offset:{L_Q + h*512 + hf*256}")
    stamp(2)
    a("v_lshrrev_b32 v5, 5, v0"); a("v_lshlrev_b32 v5, 10, v5"); a("v_and_b32 v6, 15, v0"); a("v_lshlrev_b32 v6, 5, v6")
    a("v_bfe_u32 v7, v0, 4, 1"); a("v_lshlrev_b32 v7, 4, v7"); a("v_add3_u32 v5, v5, v6, v7")
    a(f"s_mul_i32 s96, s3, {OLS}"); a("v_add_u32 v5, s96, v5")
    a("v_and_b32 v6, 8, v0"); a("s_lshl_b32 s96, s3, 4"); a("v_add_u32 v6, s96, v6")
    a("v_and_b32 v7, 0x37, v0"); a("v_cmp_eq_u32 s[46:47], 0, v7")
    a.c("---- scores: lane = (key group g = l>>4, 8 dims at 8*(l&15)); dot2, then 16-lane reduction; online softmax per wave ----")
    ACC = 116
    a("s_cmp_lt_u32 s3, 12"); a("s_cbranch_scc1 L_kw0"); a("s_waitcnt vmcnt(12) lgkmcnt(0)"); a("s_branch L_kw1")
    a.label("L_kw0"); a("s_waitcnt vmcnt(8) lgkmcnt(0)"); a.label("L_kw1")
    for t in range(4):
        for hf in range(2):
            for r in range(4):
                for h in range(2):
                    kreg = KR + (t * 2 + hf) * 4 + r
                    qreg = QF + (h * 2 + hf) * 4 + r
                    acc = ACC + 2 * t + h
                    if hf == 0 and r == 0: a(f"v_dot2_f32_bf16 v{acc}, v{kreg}, v{qreg}, 0")
                    else: a(f"v_dot2c_f32_bf16 v{acc}, v{kreg}, v{qreg}")
    U, W = 124, KR
    for t in range(4): a(f"v_cndmask_b32 v{U+t}, v{ACC+2*t}, v{ACC+2*t+1}, {mB3}")
    for t in range(4): a(f"v_cndmask_b32 v{W+t}, v{ACC+2*t+1}, v{ACC+2*t}, {mB3}")
    for t in range(4): a(f"v_add_f32_dpp v{U+t}, v{W+t}, v{U+t} row_ror:8 {DPP}")
    for m in ("quad_perm:[1,0,3,2]", "quad_perm:[2,3,0,1]", "row_half_mirror"):
        for t in range(4): a(f"v_add_f32_dpp v{U+t}, v{U+t}, v{U+t} {m} {DPP}")
    for t in range(4): a(f"v_cvt_pk_bf16_f32 v{U+t}, v{U+t}, v{U+t}")
    for t in range(4): a(f"v_and_b32 v{U+t}, 0xffff0000, v{U+t}")
    MX, TMP = 116, 117
    a(f"v_max3_f32 v{MX}, v{U}, v{U+1}, v{U+2}"); a(f"v_max_f32 v{MX}, v{MX}, v{U+3}")
    a(f"v_mov_b32 v{TMP}, v{MX}"); a(f"v_permlane16_swap_b32 v{MX}, v{TMP}"); a(f"v_max_f32 v{MX}, v{MX}, v{TMP}")
    a(f"v_mov_b32 v{TMP}, v{MX}"); a(f"v_permlane32_swap_b32 v{MX}, v{TMP}"); a(f"v_max_f32 v{MX}, v{MX}, v{TMP}")
    a("s_mov_b32 s96, 0x3db8aa3b")
    for t in range(4): a(f"v_sub_f32 v{U+t}, v{U+t}, v{MX}")
    for t in range(4): a(f"v_mul_f32 v{U+t}, s96, v{U+t}")
    for t in range(4): a(f"v_exp_f32 v{U+t}, v{U+t}")
    AO = KR + 4
    for t in range(4): a(f"v_cvt_pk_bf16_f32 v{W+t}, v{U+t}, v{U+t}")
    LS = 117; T2 = 118
    a(f"v_add_f32 v{LS}, v{U}, v{U+1}"); a(f"v_add_f32 v{T2}, v{U+2}, v{U+3}")
    for t in range(4):
        for r in range(4): a(f"v_and_b32 v{AO+4*t+r}, v{W+t}, v{8+r}")
        if t == 0: a(f"v_add_f32 v{LS}, v{LS}, v{T2}")
        if t == 1: a(f"v_mov_b32 v{T2}, v{LS}")
        if t == 2: a(f"v_permlane16_swap_b32 v{LS}, v{T2}"); a(f"v_add_f32 v{LS}, v{LS}, v{T2}")
        if t == 3: a(f"v_mov_b32 v{T2}, v{LS}")
    a(f"v_permlane32_swap_b32 v{LS}, v{T2}"); a(f"v_add_f32 v{LS}, v{LS}, v{T2}")
    a.c("---- P*V: A = selector matrix with the probabilities, B = V rows as loaded ----")
    a("s_mov_b64 s[74:75], exec"); a("s_mov_b64 exec, s[46:47]")
    a(f"ds_write_b64 v6, v[{MX}:{LS}] offset:{L_ST}")
    a("s_mov_b64 exec, s[74:75]")
    for t in range(4):
        a(f"s_waitcnt vmcnt({12 - 2*(t+1)})")
        a("s_cmp_lt_u32 s3, 12"); a(f"s_cbranch_scc0 L_vw{t}")
        a(f"s_waitcnt vmcnt({8 - 2*(t+1)})")
        a.label(f"L_vw{t}")
        for hf in range(2):
            vr = VR + (t * 2 + hf) * 4
            d = 12 + 4 * hf
            c = "0" if t == 0 else f"v[{d}:{d+3}]"
            a(f"v_mfma_f32_16x16x32_bf16 v[{d}:{d+3}], v[{AO+4*t}:{AO+4*t+3}], v[{vr}:{vr+3}], {c}")
    a(f"ds_write_b128 v5, v[12:15] offset:{L_OL}")
    a(f"ds_write_b128 v5, v[16:19] offset:{L_OL + 512}")
    stamp(3)
    if adpar:
        a("s_mov_b32 s99, 0")
        a(f"s_cmp_eq_u32 s3, {fw}"); a("s_cbranch_scc0 L_ffn2_done"); a("s_cmp_lt_u32 s2, 224"); a("s_cbranch_scc0 L_ffn2_done")
        a("s_lshl_b32 s75, s65, 12"); a("s_or_b32 s75, s75, s64"); a("v_mov_b32 v7, 0"); a("s_mov_b32 s98, 0")
        a.label("L_parw")
        a(f"buffer_load_dword v4, v7, {WS}, 0 offen offset:{PARW} sc1")
        a("s_add_u32 s98, s98, 1"); a("s_waitcnt vmcnt(0)")
        a("v_readfirstlane_b32 s74, v4")
        a("s_and_b32 s96, s74, 0xffffff"); a("s_cmp_eq_u32 s96, s75"); a("s_cbranch_scc1 L_parok")
        a(f"s_sleep {max(retry_sleep, 8)}")
        a(f"s_cmp_gt_u32 s98, {SPIN_MAX}"); a("s_cbranch_scc0 L_parw")
        a.label("L_parok")
        a("s_lshr_b32 s74, s74, 24"); a("s_xor_b32 s74, s74, s2"); a("s_and_b32 s74, s74, 1"); a("s_xor_b32 s99, s74, 1")
        a("s_cmp_eq_u32 s99, 1"); a("s_cbranch_scc1 L_ffn2")
    elif not dynffn:
        a(f"s_cmp_eq_u32 s3, {fw}"); a("s_cbranch_scc0 L_ffn2_done"); a("s_cmp_lt_u32 s2, 224"); a("s_cbranch_scc0 L_ffn2_done")
        a("s_and_b32 s74, s2, 1"); a("s_cmp_eq_u32 s74, 0"); a("s_cbranch_scc1 L_ffn2")
    else:
        a(f"s_cmp_eq_u32 s3, {fw}"); a("s_cbranch_scc0 L_ffn2_done")
        a("s_mov_b32 s48, s24"); a("s_mov_b32 s49, s25"); a("s_mov_b32 s50, 256"); a("s_mov_b32 s51, 0x20000")
        a("v_mov_b32 v4, 1"); a("v_mov_b32 v7, 0"); a("s_mov_b64 s[74:75], exec"); a("s_mov_b64 exec, 1")
        a("buffer_atomic_add v4, v7, s[48:51], 0 offen sc0 sc1")
        a("s_waitcnt vmcnt(0)")
        a("v_readfirstlane_b32 s99, v4")
        a("s_mov_b64 exec, s[74:75]")
        a("s_cmp_lt_u32 s99, 112"); a("s_cbranch_scc1 L_ffn2")
    a.label("L_ffn2_done")
    if prewarm:
        a(f"s_cmp_eq_u32 s3, {prewarm}"); a("s_cbranch_scc0 L_nowarm"); a("s_cmp_eq_u32 s100, 2"); a("s_cbranch_scc0 L_nowarm")
        a("s_lshl_b32 s74, s60, 5"); a("s_add_u32 s74, s74, s61"); a(f"s_mul_i32 s74, s74, {R1}"); a(f"s_add_u32 s74, s74, {P1}")
        a("v_lshlrev_b32 v4, 4, v0")
        for i in range(4): a(f"buffer_load_dwordx4 v[{36+4*i}:{39+4*i}], v4, {WS}, s74 offen offset:{1024*i}")
        a.label("L_nowarm")
    a("s_sub_u32 s74, s3, 4"); a("s_cmp_lt_u32 s74, 4"); a("s_cbranch_scc0 L_bar2")
    a("v_and_b32 v4, 31, v0"); a("v_lshlrev_b32 v5, 4, v4"); a("v_lshrrev_b32 v6, 5, v0"); a(f"v_mul_u32_u24 v7, {8*OLS}, v6"); a("v_add_u32 v5, v5, v7")
    a("s_lshr_b32 s75, s74, 1"); a("s_lshl_b32 s96, s75, 10"); a("s_and_b32 s97, s74, 1"); a("s_lshl_b32 s97, s97, 9"); a("s_add_u32 s96, s96, s97"); a("v_add_u32 v5, s96, v5")
    a("v_lshlrev_b32 v7, 3, v6"); a("v_add_u32 v7, v7, v0"); a("v_and_b32 v7, 15, v7"); a("v_lshlrev_b32 v7, 4, v7"); a("s_lshl_b32 s96, s75, 3")
    a("v_lshlrev_b32 v3, 6, v6")
    a("v_add_u32 v6, s96, v7")
    a("v_lshrrev_b32 v7, 2, v4"); a(f"v_mul_u32_u24 v7, {R1}, v7"); a("v_and_b32 v4, 3, v0"); a("v_lshlrev_b32 v4, 4, v4"); a("v_add3_u32 v7, v7, v4, v3")
    a("s_lshl_b32 s75, s60, 5"); a("s_lshl_b32 s96, s74, 3"); a("s_add_u32 s75, s75, s96"); a(f"s_mul_i32 s75, s75, {R1}")
    a("s_lshr_b32 s96, s63, 2"); a("s_lshl_b32 s96, s96, 3"); a("s_lshl_b32 s97, s62, 2"); a("s_add_u32 s96, s96, s97"); a("s_and_b32 s97, s63, 3"); a("s_add_u32 s96, s96, s97")
    a("s_lshl_b32 s96, s96, 7"); a("s_add_u32 s75, s75, s96"); a(f"s_add_u32 s75, s75, {P1}")
    a("v_mov_b32 v33, 0xfffff000"); a("s_mov_b32 s96, 0x3db8aa3b")
    a("s_setprio 3")
    a.label("L_bar2")
    a("s_waitcnt lgkmcnt(0)")
    a("s_barrier")
    if x_endat == 1: a("s_branch L_exit")
    stamp(4)
    a("s_cmp_lt_u32 s74, 4"); a("s_cbranch_scc0 L_notcomb")
    a.c("---- waves 4..7: combine the 16 wave partials, publish one 128-byte line per consumer (P1) ----")
    a(f"ds_read_b64 v[28:29], v6 offset:{L_ST}")
    OR = 36
    for j8 in range(8): a(f"ds_read_b128 v[{OR+4*j8}:{OR+4*j8+3}], v5 offset:{L_OL + j8*OLS}")
    a("s_waitcnt lgkmcnt(8)")
    a("v_mov_b32 v34, v28")
    for m in ("row_ror:8", "row_ror:4", "row_ror:2", "row_ror:1"):
        a(f"v_max_f32_dpp v34, v34, v34 {m} {DPP}")
    a("v_sub_f32 v35, v28, v34"); a("v_mul_f32 v35, s96, v35"); a("v_exp_f32 v35, v35")
    a("v_mul_f32 v29, v35, v29")
    rors = ["row_ror:8", "row_ror:4", "row_ror:2", "row_ror:1"]
    for j8 in range(8):
        a(f"s_waitcnt lgkmcnt({7-j8})")
        for k in range(4):
            op = "v_mul_f32_dpp" if j8 == 0 else "v_fmac_f32_dpp"
            a(f"{op} v{20+k}, v35, v{OR+4*j8+k} row_newbcast:{j8} {DPP}")
        if j8 < 4: a(f"v_add_f32_dpp v29, v29, v29 {rors[j8]} {DPP}")
    for k in range(4): a(f"v_mov_b32 v{24+k}, v{20+k}")
    for k in range(4): a(f"v_permlane32_swap_b32 v{20+k}, v{24+k}")
    for k in range(4): a(f"v_add_f32 v{20+k}, v{20+k}, v{24+k}")
    a(f"v_cndmask_b32 v20, v34, v20, {mLO}"); a(f"v_cndmask_b32 v21, v29, v21, {mLO}"); a(f"v_cndmask_b32 v22, v34, v22, {mLO}"); a(f"v_cndmask_b32 v23, v29, v23, {mLO}")
    for k in range(4): a(f"v_and_or_b32 v{20+k}, v{20+k}, v33, {T[k]}")
    a("s_cmp_eq_u32 s100, 2"); a("s_cbranch_scc1 L_p1fast")
    a(f"buffer_store_dwordx4 v[20:23], v7, {WS}, s75 offen sc1")
    a("s_branch L_p1pub")
    a.label("L_p1fast")
    a(f"buffer_store_dwordx4 v[20:23], v7, {WS}, s75 offen")
    a.label("L_p1pub")
    lds_inc(L_PUBCNT)
    a("s_setprio 0")
    stamp(5)
    a("s_branch L_aux_done")
    a.label("L_notcomb")
    a("s_cmp_lt_u32 s3, 12"); a("s_cbranch_scc1 L_aux")

    a.c("---- waves 12..15: combine the 16 key splits for 16 rows of wo (both batches), project, publish P2 ----")
    if x_endat == 2: a("s_branch L_exit")
    a("s_setprio 3")
    GR = 36
    if ngw == 1:
        a("s_cmp_eq_u32 s3, 12"); a("s_cbranch_scc1 L_s2lead")
        pub_lane_addr("v5", "v6", "v7")
        a("s_sub_u32 s75, s3, 12"); a(f"s_mul_i32 s99, s75, {4*R2}"); a("s_lshl_b32 s97, s60, 5"); a("s_add_u32 s97, s97, s61"); a("s_lshl_b32 s97, s97, 7"); a("s_add_u32 s99, s99, s97"); a(f"s_add_u32 s99, s99, {P2}")
        a("v_bfe_u32 v7, v0, 3, 1"); a("v_lshlrev_b32 v7, 6, v7"); a("v_lshrrev_b32 v16, 4, v0"); a("v_lshlrev_b32 v16, 4, v16"); a("v_add_u32 v7, v7, v16")
        a("v_mov_b32 v33, 0xfffff000")
        a("s_cmp_eq_u32 s3, 15"); a("s_cselect_b32 s97, 8, 16"); a("v_and_b32 v20, 15, v0"); a("v_cmp_gt_u32 s[46:47], s97, v20")
        lds_wait_ge(L_S2FLAG, 1, "L_s2w")
        a("s_waitcnt vmcnt(0)")
        a("s_branch L_s2go")
        a.label("L_s2lead")
    a("s_lshl_b32 s74, s60, 5"); a("s_add_u32 s74, s74, s61"); a(f"s_mul_i32 s74, s74, {R1}"); a(f"s_add_u32 s74, s74, {P1}")
    a("v_lshlrev_b32 v4, 4, v0")
    a("s_mov_b32 s98, 0")
    if p1wait_f is None:
        a("s_cmp_eq_u32 s100, 2"); a("s_cbranch_scc1 L_p1df")
    lds_wait_ge(L_PUBCNT, 4, "L_pubw")
    if p1wait_f is not None:
        if p1wait_f: a(f"s_sleep {p1wait_f}")
        a("s_cmp_eq_u32 s100, 2"); a("s_cbranch_scc1 L_p1df")
    if p1delay:
        a.c("device-scope mode only: back-off until the write-through stores have landed")
        a(f"s_sleep {p1delay}")
    a.label("L_p1df")
    stamp(11)
    def p1ld():
        for i in range(4): a(f"buffer_load_dwordx4 v[{GR+4*i}:{GR+4*i+3}], v4, {WS}, s74 offen offset:{1024*i} sc1")
    p1ld()
    pub_lane_addr("v5", "v6", "v7")
    a("s_sub_u32 s75, s3, 12"); a(f"s_mul_i32 s99, s75, {4*R2}"); a("s_lshl_b32 s97, s60, 5"); a("s_add_u32 s97, s97, s61"); a("s_lshl_b32 s97, s97, 7"); a("s_add_u32 s99, s99, s97"); a(f"s_add_u32 s99, s99, {P2}")
    if ngw == 1:
        a("v_lshrrev_b32 v6, 5, v0"); a("v_lshlrev_b32 v6, 6, v6"); a("v_and_b32 v16, 7, v0"); a("v_lshlrev_b32 v16, 4, v16"); a("v_add_u32 v6, v6, v16")
        a("v_bfe_u32 v16, v0, 4, 1"); a("v_lshlrev_b32 v16, 2, v16"); a("v_add_u32 v6, v6, v16")
        a("v_bfe_u32 v7, v0, 3, 1"); a("v_lshlrev_b32 v7, 6, v7"); a("v_lshrrev_b32 v16, 4, v0"); a("v_lshlrev_b32 v16, 4, v16"); a("v_add_u32 v7, v7, v16")
    else:
        a("v_bfe_u32 v6, v0, 3, 1"); a("v_lshlrev_b32 v6, 7, v6"); a("v_lshrrev_b32 v16, 4, v0"); a("v_lshlrev_b32 v16, 2, v16"); a("v_add_u32 v6, v6, v16"); a("v_add_u32 v7, 64, v6")
    a("v_mov_b32 v33, 0xfffff000"); a("s_mov_b32 s96, 0x3db8aa3b")
    a("s_cmp_eq_u32 s3, 15"); a("s_cselect_b32 s97, 8, 16"); a("v_and_b32 v20, 15, v0"); a("v_cmp_gt_u32 s[46:47], s97, v20")
    a("s_branch L_p1chk")
    a.label("L_p1poll")
    a("s_cmp_eq_u32 s100, 2"); a("s_cbranch_scc1 L_p1rf")
    if p1retry: a(f"s_sleep {p1retry}")
    a.label("L_p1rf")
    p1ld()
    a.label("L_p1chk")
    a("s_add_u32 s98, s98, 1")
    a("s_waitcnt vmcnt(0)")
    untag(GR, 4)
    or_tree(range(GR, GR + 16), "v16")
    a("s_cbranch_vccz L_p1ok")
    if x_nop1: a("s_branch L_p1ok")
    a(f"s_cmp_gt_u32 s98, {SPIN_MAX}"); a("s_cbranch_scc0 L_p1poll")
    a.label("L_p1ok")
    stamp(6)
    if stamps: a("s_mov_b32 s101, s98")
    G = GR
    a(f"v_max3_f32 v16, v{G}, v{G+4}, v{G+8}"); a(f"v_max_f32 v16, v16, v{G+12}")
    a(f"v_max_f32_dpp v16, v16, v16 row_ror:8 {DPP}")
    a("v_mov_b32 v17, v16"); a("v_permlane16_swap_b32 v16, v17"); a("v_max_f32 v16, v16, v17")
    for i in range(4): a(f"v_sub_f32 v{20+i}, v{G+4*i}, v16")
    for i in range(4): a(f"v_mul_f32 v{20+i}, s96, v{20+i}")
    for i in range(4): a(f"v_exp_f32 v{20+i}, v{20+i}")
    a(f"v_mul_f32 v17, v20, v{G+1}")
    for i in range(1, 4): a(f"v_fmac_f32 v17, v{20+i}, v{G+4*i+1}")
    for t in range(4): a(f"v_mul_f32_dpp v{24+t}, v20, v{G+t} row_shl:4 {DPP}")
    a(f"v_add_f32_dpp v17, v17, v17 row_ror:8 {DPP}")
    for i in range(1, 4):
        for t in range(4): a(f"v_fmac_f32_dpp v{24+t}, v{20+i}, v{G+4*i+t} row_shl:4 {DPP}")
        if i == 1: a("v_mov_b32 v18, v17")
        if i == 2: a("v_permlane16_swap_b32 v17, v18"); a("v_add_f32 v17, v17, v18")
        if i == 3: a("v_rcp_f32 v17, v17")
    for t in range(4): a(f"v_add_f32_dpp v{24+t}, v{24+t}, v{24+t} row_ror:8 {DPP}")
    a("v_permlane16_swap_b32 v24, v25"); a("v_permlane16_swap_b32 v26, v27")
    a("v_add_f32 v24, v24, v25"); a("v_add_f32 v26, v26, v27")
    a(f"v_mul_f32_dpp v24, v17, v24 row_shl:4 {DPP}"); a(f"v_mul_f32_dpp v26, v17, v26 row_shl:4 {DPP}")
    a("v_cvt_pk_bf16_f32 v24, v24, v24"); a("v_cvt_pk_bf16_f32 v26, v26, v26")
    if ngw == 1:
        a("v_and_b32 v16, 15, v0"); a("v_cmp_gt_u32 vcc, 4, v16"); a("s_and_saveexec_b64 s[74:75], vcc")
        a(f"ds_write_b32 v6, v24 offset:{L_S2}"); a(f"ds_write_b32 v6, v26 offset:{L_S2+8}")
        a("s_mov_b64 exec, s[74:75]")
        a("s_waitcnt lgkmcnt(0)")
        a("v_mov_b32 v2, 0"); a("v_mov_b32 v3, 1"); a(f"ds_write_b32 v2, v3 offset:{L_S2FLAG}")
        a.label("L_s2go")
        a(f"ds_read_b128 v[20:23], v7 offset:{L_S2}")
        a("s_waitcnt lgkmcnt(0)")
    else:
        a("ds_bpermute_b32 v20, v6, v24"); a("ds_bpermute_b32 v21, v7, v24"); a("ds_bpermute_b32 v22, v6, v26"); a("ds_bpermute_b32 v23, v7, v26")
    AR = 68
    for t in range(4):
        if ngw != 1: a(f"s_waitcnt lgkmcnt({3-t})")
        for r in range(4): a(f"v_and_b32 v{AR+4*t+r}, v{20+t}, v{8+r}")
        c = "0" if t == 0 else "v[12:15]"
        a(f"v_mfma_f32_16x16x32_bf16 v[12:15], v[{AR+4*t}:{AR+4*t+3}], v[{WOR+4*t}:{WOR+4*t+3}], {c}")
    for i in range(4): a(f"v_and_or_b32 v{16+i}, v{12+i}, v33, {T[i]}")
    a("s_mov_b64 s[74:75], exec"); a("s_mov_b64 exec, s[46:47]")
    a(f"buffer_store_dwordx4 v[16:19], v5, {WS}, s99 offen sc1")
    a("s_mov_b64 exec, s[74:75]")
    lds_inc(L_P2CNT)
    a("s_setprio 0")
    stamp(7)
    a("s_branch L_aux_done")

    a.label("L_aux")
    a.c("---- FFN partial publish; final-reduction workgroups gather the FFN rows and form silu(y) ----")
    a(f"s_cmp_eq_u32 s3, {fw}"); a("s_cbranch_scc0 L_ygather")
    if adpar:
        a("s_cmp_eq_u32 s99, 1"); a("s_cbranch_scc0 L_aux_done")
        pub_lane_addr("v4", "v6", "v7")
        a("s_lshr_b32 s74, s2, 1"); a("s_lshl_b32 s74, s74, 7"); a(f"s_add_u32 s74, s74, {YP}")
    elif not dynffn:
        a("s_cmp_lt_u32 s2, 224"); a("s_cbranch_scc0 L_aux_done")
        a("s_and_b32 s74, s2, 1"); a("s_cmp_eq_u32 s74, 0"); a("s_cbranch_scc0 L_aux_done")
        pub_lane_addr("v4", "v6", "v7")
        a("s_lshr_b32 s74, s2, 1"); a("s_lshl_b32 s74, s74, 7"); a(f"s_add_u32 s74, s74, {YP}")
    else:
        a("s_cmp_lt_u32 s99, 112"); a("s_cbranch_scc0 L_aux_done")
        pub_lane_addr("v4", "v6", "v7")
        a("s_lshl_b32 s74, s99, 7"); a(f"s_add_u32 s74, s74, {YP}")
    for c in range(4):
        if c == 3:
            a("v_and_b32 v5, 15, v0"); a("v_cmp_gt_u32 vcc, 8, v5"); a("s_and_saveexec_b64 s[96:97], vcc")
        a(f"buffer_store_dwordx4 v[{100+4*c}:{103+4*c}], v4, {WS}, s74 offen sc1")
        if c == 3: a("s_mov_b64 exec, s[96:97]")
        else: a(f"s_add_u32 s74, s74, {4*R2}")
    a("s_branch L_aux_done")

    a.label("L_ygather")
    if x_endat >= 2: a("s_branch L_exit")
    a("s_cmp_lt_u32 s2, 28"); a("s_cbranch_scc0 L_exit")
    if fw == 1:
        a("s_sub_u32 s75, s3, 1"); a("s_cmp_eq_u32 s3, 0"); a("s_cselect_b32 s75, 0, s75")
    elif fw == 2:
        a("s_cmp_eq_u32 s3, 3"); a("s_cselect_b32 s75, 2, s3")
    else:
        a("s_mov_b32 s75, s3")
    a("s_sub_u32 s74, s3, 5"); a("s_cmp_ge_u32 s3, 8"); a("s_cselect_b32 s75, s74, s75")
    a(f"s_mul_i32 s74, s2, {R2}"); a("s_lshl_b32 s96, s75, 11"); a("s_add_u32 s74, s74, s96"); a(f"s_add_u32 s74, s74, {YP}")
    a("v_lshlrev_b32 v4, 4, v0"); a("s_mov_b32 s98, 0")
    col_addr("v5", "v6"); a("s_lshl_b32 s75, s75, 7"); a("v_add_u32 v5, s75, v5")
    lds_wait_ge(L_PUBCNT, 4, "L_ypw", 2)
    if p1delay:
        a.c("back-off until the write-through stores have landed")
        a(f"s_sleep {p1delay}")
    a.label("L_ypoll")
    for i in range(2): a(f"buffer_load_dwordx4 v[{36+4*i}:{39+4*i}], v4, {WS}, s74 offen offset:{1024*i} sc1")
    a("s_add_u32 s98, s98, 1"); a("s_waitcnt vmcnt(0)")
    untag(36, 2)
    or_tree(range(36, 44), "v16")
    a("s_cbranch_vccz L_yok")
    a(f"s_sleep {max(p1retry, 8)}")
    a(f"s_cmp_gt_u32 s98, {SPIN_MAX}"); a("s_cbranch_scc0 L_ypoll")
    a.label("L_yok")
    for k in range(4): a(f"v_add_f32 v{36+k}, v{36+k}, v{40+k}")
    reduce4(36)
    a("v_and_b32 v6, 8, v0"); a("v_cmp_eq_u32 vcc, 0, v6"); a("s_and_saveexec_b64 s[74:75], vcc")
    a(f"ds_write_b32 v5, v36 offset:{L_YR}")
    a("s_mov_b64 exec, s[74:75]")
    a("s_waitcnt lgkmcnt(0)")
    lds_inc(L_YCNT)
    a("s_cmp_eq_u32 s3, 0"); a("s_cbranch_scc0 L_final")
    a("s_mul_hi_u32 s74, s2, 0x12492493")
    a("s_mul_i32 s75, s74, 14"); a("s_sub_u32 s75, s2, s75")
    a("s_mul_i32 s74, s74, 896"); a("s_lshl_b32 s75, s75, 6"); a("s_add_u32 s99, s74, s75")
    a("v_and_b32 v50, 31, v0"); a("v_lshlrev_b32 v51, 1, v50")
    a(f"buffer_load_ushort v52, v51, {XS}, s99 offen")
    if outwarm: a(f"buffer_load_ushort v56, v51, {OUT}, s99 offen")
    lds_wait_ge(L_YCNT, 7, "L_ywait")
    a("v_lshlrev_b32 v53, 2, v50")
    for k in range(7): a(f"ds_read_b32 v{36+k}, v53 offset:{L_YR + 128*k}")
    a("s_waitcnt lgkmcnt(0)")
    a("v_add_f32 v36, v36, v37"); a("v_add_f32 v38, v38, v39"); a("v_add_f32 v40, v40, v41"); a("v_add_f32 v36, v36, v42")
    a("v_add_f32 v36, v36, v38"); a("v_add_f32 v36, v36, v40")
    a("v_cvt_pk_bf16_f32 v36, v36, v36"); a("v_and_b32 v36, 0xffff0000, v36")
    a("v_mul_f32 v37, 0xbfb8aa3b, v36"); a("v_exp_f32 v37, v37"); a("v_add_f32 v37, 1.0, v37"); a("v_rcp_f32 v37, v37"); a("v_mul_f32 v37, v36, v37")
    a("v_cvt_pk_bf16_f32 v37, v37, v37"); a("v_and_b32 v54, 0xffff0000, v37")
    a("s_waitcnt vmcnt(0)"); a("v_lshlrev_b32 v52, 16, v52")
    a("v_lshrrev_b32 v55, 5, v0"); a("v_lshlrev_b32 v55, 10, v55"); a("v_add_u32 v55, v55, v53")
    a("s_branch L_final")

    a.label("L_aux_done")
    if x_endat >= 2: a("s_branch L_exit")
    a("s_cmp_lt_u32 s2, 28"); a("s_cbranch_scc0 L_exit")
    a.label("L_final")
    a.c("---- final reduction of 32 output columns over the 256 P2 rows, epilogue x + s*g ----")
    a(f"s_mul_i32 s74, s2, {R2}"); a("s_lshl_b32 s75, s3, 11"); a("s_add_u32 s74, s74, s75"); a(f"s_add_u32 s74, s74, {P2}")
    a("v_lshlrev_b32 v4, 4, v0"); a("s_mov_b32 s98, 0")
    col_addr("v5", "v6"); a("s_lshl_b32 s75, s3, 7"); a("v_add_u32 v5, s75, v5")
    a("v_and_b32 v6, 8, v0"); a("v_cmp_eq_u32 s[46:47], 0, v6")
    lds_wait_ge(L_P2CNT, 4, "L_p2w", 1)
    if stamps:
        a("s_cmp_lt_u32 s3, 2"); a("s_cbranch_scc1 L_nost"); a("s_cmp_eq_u32 s3, 12"); a("s_cbranch_scc1 L_nost")
        stamp(11)
        a.label("L_nost")
    a.label("L_fpoll")
    for i in range(2): a(f"buffer_load_dwordx4 v[{36+4*i}:{39+4*i}], v4, {WS}, s74 offen offset:{1024*i} sc1")
    a("s_add_u32 s98, s98, 1"); a("s_waitcnt vmcnt(0)")
    untag(36, 2)
    or_tree(range(36, 44), "v16")
    a("s_cbranch_vccz L_fok")
    if x_nop2: a("s_branch L_fok")
    a(f"s_cmp_gt_u32 s98, {SPIN_MAX}"); a("s_cbranch_scc0 L_fpoll")
    a.label("L_fok")
    stamp(8)
    if stamps:
        a("s_cmp_eq_u32 s3, 12"); a("s_cselect_b32 s101, s101, s98")
    for k in range(4): a(f"v_add_f32 v{36+k}, v{36+k}, v{40+k}")
    reduce4(36)
    a("s_mov_b64 s[74:75], exec"); a("s_mov_b64 exec, s[46:47]")
    a(f"ds_write_b32 v5, v36 offset:{L_SR}")
    a("s_mov_b64 exec, s[74:75]")
    a("s_waitcnt lgkmcnt(0)")
    a("s_barrier")
    a("s_cmp_eq_u32 s3, 0"); a("s_cbranch_scc1 L_epi")
    a("s_cmp_eq_u32 s3, 1"); a("s_cbranch_scc0 L_exit"); a("s_cmp_eq_u32 s2, 0"); a("s_cbranch_scc0 L_exit")
    a("s_mov_b64 exec, 1")
    a("v_mov_b32 v4, s68"); a("v_mov_b32 v5, s69"); a("v_mov_b32 v6, 0")
    a(f"buffer_store_dwordx2 v[4:5], v6, {WS}, 0 offen")
    a("s_branch L_exit")
    a.label("L_epi")
    for k in range(8): a(f"ds_read_b32 v{36+k}, v55 offset:{L_SR + 128*k}")
    a("s_waitcnt lgkmcnt(4)")
    a("v_add_f32 v36, v36, v37"); a("v_add_f32 v38, v38, v39")
    a("s_waitcnt lgkmcnt(0)")
    a("v_add_f32 v40, v40, v41"); a("v_add_f32 v42, v42, v43")
    a("v_add_f32 v36, v36, v38"); a("v_add_f32 v40, v40, v42"); a("v_add_f32 v36, v36, v40")
    a("v_mov_b32 v37, v36"); a("v_permlane32_swap_b32 v36, v37"); a("v_add_f32 v36, v36, v37")
    a("v_cvt_pk_bf16_f32 v36, v36, v36"); a("v_and_b32 v36, 0xffff0000, v36")
    a("v_mul_f32 v36, v36, v54"); a("v_cvt_pk_bf16_f32 v36, v36, v36"); a("v_and_b32 v36, 0xffff0000, v36")
    a("v_add_f32 v36, v52, v36"); a("v_cvt_pk_bf16_f32 v36, v36, v36")
    a(f"s_mov_b64 exec, {mLO}")
    a(f"buffer_store_short v36, v51, {OUT}, s99 offen {outflag}")
    a("s_branch L_exit")

    a.label("L_ffn2")
    a.c("---- second FFN stage: gelu(gate)*up for 16 columns, times 16 rows of w_down ----")
    a("s_waitcnt lgkmcnt(0)")
    srd(48, sWD, 1792 * 896)
    if dynffn: a("s_mov_b32 s75, s99")
    else: a("s_lshr_b32 s75, s2, 1")
    a(f"s_mul_i32 s74, s75, {16*896}")
    a("v_lshrrev_b32 v6, 2, v0"); a("v_mul_u32_u24 v6, 7168, v6"); a("v_and_b32 v5, 3, v0"); a("v_lshlrev_b32 v5, 4, v5"); a("v_add_u32 v6, v6, v5")
    a("s_lshl_b32 s75, s75, 6"); a(f"s_add_u32 s75, s75, {FP}"); a("s_mov_b32 s98, 0")
    G_, U_, X_, HV = 100, 104, 108, 112
    a(f"buffer_load_dwordx4 v[{G_}:{G_+3}], v6, {WS}, s75 offen sc1")
    a("v_lshrrev_b32 v4, 4, v0"); a("v_mul_u32_u24 v4, 3584, v4"); a("v_and_b32 v5, 15, v0"); a("v_lshlrev_b32 v5, 4, v5"); a("v_add_u32 v4, v4, v5")
    WD16 = lambda t, c: 36 + (t * 4 + c) * 4
    for t in range(4):
        for c in range(4):
            r = WD16(t, c)
            a(f"buffer_load_dwordx4 v[{r}:{r+3}], v4, {WD}, s74 offen offset:{t*896 + c*256} {wflag}")
    a("s_waitcnt vmcnt(16)")
    a("s_branch L_fchk")
    a.label("L_fpoll2")
    if retry_sleep: a(f"s_sleep {retry_sleep}")
    a(f"buffer_load_dwordx4 v[{G_}:{G_+3}], v6, {WS}, s75 offen sc1")
    a("s_waitcnt vmcnt(0)")
    a.label("L_fchk")
    a("s_add_u32 s98, s98, 1")
    untag(G_, 1)
    or_tree(range(G_, G_ + 4), "v16")
    a("s_cbranch_vccz L_fgot")
    a(f"s_cmp_gt_u32 s98, {SPIN_MAX}"); a("s_cbranch_scc0 L_fpoll2")
    a.label("L_fgot")
    for k in range(4): a(f"v_add_f32_dpp v{G_+k}, v{G_+k}, v{G_+k} row_ror:8 {DPP}")
    for k in range(4): a(f"v_mov_b32 v{U_+k}, v{G_+k}")
    for k in range(4): a(f"v_permlane16_swap_b32 v{G_+k}, v{U_+k}")
    for k in range(4): a(f"v_add_f32 v{G_+k}, v{G_+k}, v{U_+k}")
    for k in range(4): a(f"v_mov_b32 v{U_+k}, v{G_+k}")
    for k in range(4): a(f"v_permlane32_swap_b32 v{G_+k}, v{U_+k}")
    for k in range(4): a(f"v_cvt_pk_bf16_f32 v{G_+k}, v{G_+k}, v{U_+k}")
    for k in range(4):
        a(f"v_and_b32 v{U_+k}, 0xffff0000, v{G_+k}"); a(f"v_lshlrev_b32 v{G_+k}, 16, v{G_+k}")
    a("s_mov_b32 s96, 0x3d372713"); a("s_mov_b32 s97, 0xc0135761")
    for k in range(4): a(f"v_mul_f32 v{X_+k}, v{G_+k}, v{G_+k}")
    for k in range(4): a(f"v_fma_f32 v{X_+k}, v{X_+k}, s96, 1.0")
    for k in range(4): a(f"v_mul_f32 v{X_+k}, v{X_+k}, v{G_+k}")
    for k in range(4): a(f"v_mul_f32 v{X_+k}, s97, v{X_+k}")
    for k in range(4): a(f"v_exp_f32 v{X_+k}, v{X_+k}")
    for k in range(4): a(f"v_add_f32 v{X_+k}, 1.0, v{X_+k}")
    for k in range(4): a(f"v_rcp_f32 v{X_+k}, v{X_+k}")
    for k in range(4): a(f"v_mul_f32 v{X_+k}, v{X_+k}, v{G_+k}")
    for k in range(4): a(f"v_cvt_pk_bf16_f32 v{X_+k}, v{X_+k}, v{X_+k}")
    for k in range(4): a(f"v_and_b32 v{X_+k}, 0xffff0000, v{X_+k}")
    for k in range(4): a(f"v_mul_f32 v{X_+k}, v{X_+k}, v{U_+k}")
    for k in range(4): a(f"v_cvt_pk_bf16_f32 v{X_+k}, v{X_+k}, v{X_+k}")
    a("v_lshlrev_b32 v5, 4, v0"); a("v_cmp_gt_u32 vcc, 8, v0"); a("s_and_saveexec_b64 s[96:97], vcc")
    a(f"ds_write_b128 v5, v[{X_}:{X_+3}] offset:{L_HD}")
    a("s_mov_b64 exec, s[96:97]")
    a("v_bfe_u32 v5, v0, 3, 1"); a("v_lshlrev_b32 v5, 6, v5"); a("v_lshrrev_b32 v7, 4, v0"); a("v_lshlrev_b32 v7, 4, v7"); a("v_add_u32 v5, v5, v7")
    a("s_waitcnt lgkmcnt(0)")
    a(f"ds_read_b128 v[{HV}:{HV+3}], v5 offset:{L_HD}")
    a("v_mov_b32 v116, 0xfffff000")
    a("s_waitcnt lgkmcnt(0) vmcnt(0)")
    for t in range(4):
        for r in range(4): a(f"v_and_b32 v{20+4*t+r}, v{HV+t}, v{8+r}")
    for half in range(2):
        for cc in range(2):
            c = 2 * half + cc
            for t in range(4):
                r = WD16(t, c)
                src = "0" if t == 0 else f"v[{12+4*cc}:{15+4*cc}]"
                a(f"v_mfma_f32_16x16x32_bf16 v[{12+4*cc}:{15+4*cc}], v[{20+4*t}:{23+4*t}], v[{r}:{r+3}], {src}")
        for cc in range(2):
            c = 2 * half + cc
            for k in range(4): a(f"v_and_or_b32 v{100+4*c+k}, v{12+4*cc+k}, v116, {T[k]}")
    stamp(11)
    a("s_branch L_ffn2_done")

    a.label("L_exit")
    if stamps:
        a("s_memrealtime s[96:97]")
        a("s_waitcnt lgkmcnt(0)")
        a("s_lshl_b32 s74, s2, 4"); a("s_add_u32 s74, s74, s3"); a("s_lshl_b32 s74, s74, 6"); a(f"s_add_u32 s74, s74, {STAMP}")
        a("s_mov_b64 exec, 1")
        a("v_mov_b32 v4, 0")
        for k in range(10): a(f"v_mov_b32 v{20+k}, s{76+2*k}")
        a("v_mov_b32 v30, s96"); a("s_getreg_b32 s75, hwreg(HW_REG_XCC_ID)"); a("v_mov_b32 v31, s75")
        a("v_mov_b32 v32, s101"); a(f"buffer_store_dword v32, v4, {WS}, s74 offen offset:48")
        for q in range(3):
            a(f"buffer_store_dwordx4 v[{20+4*q}:{23+4*q}], v4, {WS}, s74 offen offset:{16*q}")
    a.label("L_end")
    a("s_endpgm")
    a.label("L_codeend")

    head = [
        "; Fused decode step:  out = x + attn(LN(x)) * silu(ffn(LN(x)))   (GQA sliding window of 4096 keys, GEGLU FFN)",
        ";",
        "; One launch, 256 workgroups (one per CU) x 16 waves.  Workgroup id = r*8 + kvh, r = batch*16 + split:",
        ";   it owns 256 keys of kv head kvh of one batch; each wave streams 16 keys of K and V into registers.",
        ";   wave 0: LayerNorm + a 112x64 tile of wq -> q partials -> gathers q for its two heads into LDS",
        ";   wave 1: LayerNorm + a 112x64 tile of w_gate / w_up -> FFN partials;  wave 3: GEGLU + 16 rows of w_down",
        ";   all   : scores (dot2), online softmax, P*V (MFMA with a selector operand), partials in LDS",
        ";   waves 4-7 : workgroup combine -> P1;  waves 12-15: split combine + 16 rows of wo -> P2",
        ";   workgroups 0-27: final reduction over the 256 P2 rows and the 112 FFN rows, epilogue.",
        "; Hand-offs between workgroups go through d_ws as 16-byte granules whose low 12 bits per dword carry a",
        "; per-launch tag (derived from a generation word kept in d_ws); readers poll until the tags match.",
        "; When all workgroups of a kv head report the same XCD, the P1 hand-off stays in that XCD's L2,",
        "; otherwise it uses device-scope stores.",
        f"; @launch grid=(256,1,1) block=(1024,1,1) lds={LDS_BYTES}",
        '.amdgcn_target "amdgcn-amd-amdhsa--gfx950"',
        ".text", f".globl {KNAME}", ".p2align 8", f".type {KNAME},@function", f"{KNAME}:"]
    tail = ['.section .rodata,"a"', ".p2align 6", f".amdhsa_kernel {KNAME}",
            "  .amdhsa_next_free_vgpr 128", "  .amdhsa_next_free_sgpr 102", "  .amdhsa_accum_offset 128",
            "  .amdhsa_group_segment_fixed_size 0", "  .amdhsa_kernarg_size 96", "  .amdhsa_user_sgpr_count 2",
            "  .amdhsa_user_sgpr_kernarg_segment_ptr 1", "  .amdhsa_system_sgpr_workgroup_id_x 1", ".end_amdhsa_kernel"]
    return "\n".join(head) + "\n" + a.text() + "\n".join(tail) + "\n"

if __name__ == "__main__":
    print(gen(), end="")
```

```python
import sys
sys.path.insert(0, "gen")
from asmlib import Asm

KNAME = "recurrent_scan__sliding_block_cached__geglu_ffn__decode_kernel"

XID = 0x200
PARW = 0x100
QP = 0x1000
FP = 0x21000
P1 = 0x40000
P2 = 0x150000
YP = 0x240000
STAMP = 0x400000
R1 = 4224
R2 = 32896
WS_BYTES = 0x40000000

L_FLAG = 0
L_YCNT = 4
L_PUBCNT = 8
L_P2CNT = 12
L_NEXT = 16
L_S2FLAG = 20
L_S2 = 3392
L_TOK = 64
L_Q = 128
L_XD = 1216
L_HD = 3008
L_ST = 3136
L_SR = 3904
L_YR = 5952
L_OL = 6976
OLS = 2064
LDS_BYTES = L_OL + 16 * OLS

DPP = "row_mask:0xf bank_mask:0xf"
SPIN_MAX = 200000

def gen(stamps=False, kvflag="nt", wflag="nt", D=8, REL=7, qdelay=55, retry_sleep=16, qsleep=2, p1delay=32, p1retry=16,
        codepf=True, rot=(1, 0, 0), ln1=True, dynq=True, Dlast=12, perm=False, Deven=None, RELeven=None, Dlast_even=None, tlbwarm=False, fw=3, ilv=None, toksleep=1, prewarm=0, p1wait_f=None, outwarm=False, dynffn=False, ngw=4, qlate=False, x_qplain=False, cen=True, qdelay_f=25, adpar=True, cen_early=True, cenw=1, cenpf=False, x_par=None, x_fplain=False, outflag="", x_nop1=False, x_nop2=False, x_endat=0, order=(4, 5, 10, 11, 0, 1, 8, 9, 12, 13, 14, 15)):
    a = Asm()
    sX, sK, sV, sWQ, sWO, sWG, sWU, sWD, sOUT, sDBG, sWSp = 4, 6, 8, 10, 12, 16, 18, 20, 22, 24, 26
    K, V, WS, TILE, WD, XS, OUT = "s[28:31]", "s[32:35]", "s[36:39]", "s[40:43]", "s[48:51]", "s[52:55]", "s[56:59]"
    T = ["s64", "s65", "s66", "s67"]
    mB3, mLO = "s[70:71]", "s[72:73]"
    KR, VR, WOR, QF = 36, 68, 100, 20

    def stamp(k):
        if stamps:
            k = {9: 6, 10: 7, 11: 9}.get(k, k)
            a(f"s_memrealtime s[{76+2*k}:{77+2*k}]")
    def srd(n, ptr, size):
        a(f"s_mov_b32 s{n}, s{ptr}"); a(f"s_mov_b32 s{n+1}, s{ptr+1}"); a(f"s_mov_b32 s{n+2}, {size:#x}"); a(f"s_mov_b32 s{n+3}, 0x20000")
    def ids():
        a("s_and_b32 s60, s2, 7"); a("s_lshr_b32 s61, s2, 3"); a("s_lshr_b32 s62, s61, 4"); a("s_and_b32 s63, s61, 15")
    def lane_consts():
        a("v_and_b32 v4, 8, v0"); a(f"v_cmp_ne_u32 {mB3}, 0, v4")
        a(f"v_cmp_gt_u32 {mLO}, 32, v0")
        a("v_and_b32 v4, 7, v0"); a("v_and_b32 v5, 1, v0"); a("v_cmp_eq_u32 vcc, 1, v5")
        a("v_mov_b32 v6, 0xffff"); a("v_mov_b32 v7, 0xffff0000"); a("v_cndmask_b32 v6, v6, v7, vcc")
        a("v_lshrrev_b32 v4, 1, v4")
        for r in range(4):
            a(f"v_cmp_eq_u32 vcc, {r}, v4"); a(f"v_cndmask_b32 v{8+r}, 0, v6, vcc")
        a("v_lshrrev_b32 v4, 4, v0"); a("v_lshlrev_b32 v4, 9, v4"); a("v_and_b32 v5, 15, v0"); a("v_lshlrev_b32 v5, 4, v5"); a("v_add_u32 v1, v4, v5")
        if ilv is None:
            a("s_mov_b32 s74, s3")
            for coef, reg in zip(rot, ("s63", "s60", "s62")):
                if coef == 1: a(f"s_add_u32 s74, s74, {reg}")
                elif coef: a(f"s_mul_i32 s75, {reg}, {coef}"); a("s_add_u32 s74, s74, s75")
            a("s_and_b32 s74, s74, 15")
            a("s_lshl_b32 s75, s62, 3"); a("s_add_u32 s75, s75, s60"); a("s_lshl_b32 s75, s75, 24"); a("s_add_u32 s75, s75, 0xE00000")
            a("s_lshl_b32 s46, s63, 17"); a("s_add_u32 s75, s75, s46"); a("s_lshl_b32 s74, s74, 13"); a("s_add_u32 s44, s74, s75")
            a("s_add_u32 s45, s44, 4096")
        else:
            grp = {2:(0,0), 3:(0,1), 6:(0,2), 7:(0,3), 4:(1,0), 5:(1,1), 10:(1,2), 11:(1,3), 0:(2,0), 1:(2,1), 8:(2,2), 9:(2,3), 12:(3,0), 13:(3,1), 14:(3,2), 15:(3,3)}
            tab = sum((g * 4 + j) << (4 * w) for w, (g, j) in grp.items())
            a(f"s_mov_b32 s74, {tab & 0xffffffff:#x}"); a(f"s_mov_b32 s75, {tab >> 32:#x}"); a("s_lshl_b32 s46, s3, 2"); a("s_lshr_b64 s[74:75], s[74:75], s46")
            a("s_and_b32 s46, s74, 3")
            a("s_lshr_b32 s74, s74, 2"); a("s_and_b32 s74, s74, 3")
            cg, cj, ck = ilv
            if cg: a(f"s_mul_i32 s75, s63, {cg}"); a("s_add_u32 s74, s74, s75")
            if ck: a(f"s_mul_i32 s75, s60, {ck}"); a("s_add_u32 s74, s74, s75")
            a("s_and_b32 s74, s74, 3")
            if cj: a("s_lshr_b32 s75, s63, 2"); a(f"s_mul_i32 s75, s75, {cj}"); a("s_add_u32 s46, s46, s75"); a("s_and_b32 s46, s46, 3")
            a("s_lshl_b32 s74, s74, 15"); a("s_lshl_b32 s46, s46, 11"); a("s_add_u32 s74, s74, s46")
            a("s_lshl_b32 s75, s62, 3"); a("s_add_u32 s75, s75, s60"); a("s_lshl_b32 s75, s75, 24"); a("s_add_u32 s75, s75, 0xE00000")
            a("s_lshl_b32 s46, s63, 17"); a("s_add_u32 s75, s75, s46"); a("s_add_u32 s44, s74, s75")
            a("s_add_u32 s45, s44, 8192")
    def late_srds():
        srd(28, sK, 0x10000000); srd(32, sV, 0x10000000); srd(56, sOUT, 1792)
    def make_tags():
        a("s_add_u32 s68, s68, 1"); a("s_addc_u32 s69, s69, 0")
        a("s_mul_i32 s96, s68, 0x7f4a7c15"); a("s_mul_hi_u32 s97, s68, 0x7f4a7c15")
        a("s_mul_i32 s75, s68, 0x9e3779b9"); a("s_add_u32 s97, s97, s75")
        a("s_mul_i32 s75, s69, 0x7f4a7c15"); a("s_add_u32 s97, s97, s75")
        a("s_and_b32 s64, s96, 0xfff"); a("s_bfe_u32 s65, s96, 0xc000c")
        a("s_lshr_b32 s66, s96, 24"); a("s_lshl_b32 s75, s97, 8"); a("s_or_b32 s66, s66, s75"); a("s_and_b32 s66, s66, 0xfff")
        a("s_bfe_u32 s67, s97, 0xc0004")
    def lds_wait_ge(addr, val, lab, sleep=0):
        a("v_mov_b32 v2, 0"); a("s_mov_b32 s97, 0")
        a.label(lab)
        a(f"ds_read_b32 v3, v2 offset:{addr}"); a("s_add_u32 s97, s97, 1"); a("s_waitcnt lgkmcnt(0)")
        a(f"v_cmp_le_u32 vcc, {val}, v3"); a(f"s_cbranch_vccnz {lab}_ok")
        if sleep: a(f"s_sleep {sleep}")
        a(f"s_cmp_gt_u32 s97, {SPIN_MAX*8}"); a(f"s_cbranch_scc0 {lab}")
        a.label(lab + "_ok")
    def lds_inc(addr):
        a("v_mov_b32 v2, 0"); a("v_mov_b32 v3, 1"); a("s_mov_b64 s[96:97], exec"); a("s_mov_b64 exec, 1")
        a(f"ds_add_u32 v2, v3 offset:{addr}")
        a("s_mov_b64 exec, s[96:97]")
    def or_tree(regs, dst):
        regs = list(regs)
        a(f"v_or3_b32 {dst}, v{regs[0]}, v{regs[1]}, v{regs[2]}"); regs = regs[3:]
        while len(regs) >= 2:
            a(f"v_or3_b32 {dst}, {dst}, v{regs[0]}, v{regs[1]}"); regs = regs[2:]
        if regs: a(f"v_or_b32 {dst}, {dst}, v{regs[0]}")
        a(f"v_and_b32 {dst}, 0xfff, {dst}"); a(f"v_cmp_ne_u32 vcc, 0, {dst}")
    def untag(base, n):
        for i in range(n):
            for k in range(4): a(f"v_xor_b32 v{base+4*i+k}, {T[k]}, v{base+4*i+k}")
    def pub_lane_addr(dst, t1, t2):
        a(f"v_lshrrev_b32 {t1}, 5, v0"); a(f"v_mul_u32_u24 {t1}, 14, {t1}"); a(f"v_bfe_u32 {t2}, v0, 2, 2"); a(f"v_add_u32 {t1}, {t1}, {t2}")
        a(f"v_mul_u32_u24 {dst}, {R2}, {t1}")
        a(f"v_and_b32 {t1}, 3, v0"); a(f"v_lshlrev_b32 {t1}, 5, {t1}"); a(f"v_bfe_u32 {t2}, v0, 4, 1"); a(f"v_lshlrev_b32 {t2}, 4, {t2}")
        a(f"v_add3_u32 {dst}, {dst}, {t1}, {t2}")
    def reduce4(base):
        for k in range(4): a(f"v_add_f32_dpp v{base+k}, v{base+k}, v{base+k} row_ror:8 {DPP}")
        a(f"v_permlane16_swap_b32 v{base}, v{base+1}"); a(f"v_permlane16_swap_b32 v{base+2}, v{base+3}")
        a(f"v_add_f32 v{base}, v{base}, v{base+1}"); a(f"v_add_f32 v{base+2}, v{base+2}, v{base+3}")
        a(f"v_permlane32_swap_b32 v{base}, v{base+2}"); a(f"v_add_f32 v{base}, v{base}, v{base+2}")
    def col_addr(dst, t1):
        a(f"v_and_b32 {dst}, 7, v0"); a(f"v_lshlrev_b32 {dst}, 4, {dst}"); a(f"v_lshrrev_b32 {t1}, 5, v0"); a(f"v_lshlrev_b32 {t1}, 3, {t1}"); a(f"v_add_u32 {dst}, {dst}, {t1}")
        a(f"v_bfe_u32 {t1}, v0, 4, 1"); a(f"v_lshlrev_b32 {t1}, 2, {t1}"); a(f"v_add_u32 {dst}, {dst}, {t1}")

    a.c("---- entry: extra workgroups leave; s3 = wave, v0 = lane; flags/tokens in LDS are zeroed ----")
    a("s_cmp_ge_u32 s2, 256"); a("s_cbranch_scc1 L_end")
    if perm:
        a("s_mul_i32 s2, s2, 37"); a("s_add_u32 s2, s2, 11"); a("s_and_b32 s2, s2, 255")
    a("s_load_dwordx16 s[4:19], s[0:1], 0")
    a("s_load_dwordx8 s[20:27], s[0:1], 64")
    stamp(0)
    a("v_lshrrev_b32 v1, 6, v0"); a("v_and_b32 v0, 63, v0")
    a("v_lshlrev_b32 v2, 1, v0"); a("v_mov_b32 v3, 0")
    a("v_readfirstlane_b32 s3, v1")
    a("v_and_b32 v2, 0x7c, v2")
    a("ds_write_b32 v2, v3")
    a("s_cmp_lt_u32 s3, 2"); a("s_cbranch_scc0 L_dpro")

    a.c("---- control waves: wave 0 = wq tile (rows 112*rb.., 64 columns), wave 1 = w_gate/w_up tile ----")
    a("s_setprio 3")
    ids()
    a("s_cmp_eq_u32 s3, 0"); a("s_cbranch_scc0 L_ctrl1")
    a("s_lshr_b32 s74, s61, 3"); a("s_and_b32 s75, s61, 7")
    a(f"s_mul_i32 s96, s74, {112*8192}"); a("s_lshl_b32 s97, s60, 10"); a("s_add_u32 s96, s96, s97"); a("s_lshl_b32 s97, s75, 7"); a("s_add_u32 s96, s96, s97")
    a("s_lshl_b32 s98, s60, 3"); a("s_add_u32 s98, s98, s74"); a("s_lshl_b32 s98, s98, 11")
    a("s_lshl_b32 s99, s75, 8"); a("s_add_u32 s98, s98, s99"); a(f"s_add_u32 s98, s98, {QP}")
    a("s_mov_b32 s99, 8192"); a("s_mov_b32 s97, 8192"); a(f"s_mov_b32 s42, {448*8192:#x}")
    a("s_waitcnt lgkmcnt(0)")
    a("s_mov_b32 s40, s10"); a("s_mov_b32 s41, s11")
    a("s_branch L_tile")
    a.label("L_ctrl1")
    a("s_lshr_b32 s47, s2, 1"); a("s_and_b32 s75, s2, 1"); a("s_lshl_b32 s75, s75, 7"); a("s_add_u32 s47, s47, s75")
    a("s_cmp_lt_u32 s47, 224"); a("s_cbranch_scc0 L_notile")
    a("s_lshr_b32 s75, s47, 1"); a("s_mul_i32 s74, s75, 4682"); a("s_lshr_b32 s74, s74, 17")
    a("s_mul_i32 s96, s74, 28"); a("s_sub_u32 s75, s75, s96")
    a(f"s_mul_i32 s96, s74, {112*3584}"); a("s_lshl_b32 s97, s75, 7"); a("s_add_u32 s96, s96, s97")
    a("s_and_b32 s99, s47, 1")
    a("s_lshl_b32 s98, s99, 2"); a("s_add_u32 s98, s98, s74"); a("s_mul_i32 s98, s98, 14336")
    a("s_lshl_b32 s97, s75, 8"); a("s_add_u32 s98, s98, s97"); a(f"s_add_u32 s98, s98, {FP}")
    a(f"s_mov_b32 s42, {448*3584:#x}")
    a("s_cmp_eq_u32 s99, 0")
    a("s_waitcnt lgkmcnt(0)")
    a("s_cselect_b32 s40, s16, s18"); a("s_cselect_b32 s41, s17, s19")
    a("s_mov_b32 s97, 3584"); a("s_mov_b32 s99, 7168")
    a.label("L_tile")
    a("s_mov_b32 s43, 0x20000")
    srd(52, sX, 1792)
    TR = 40
    a("v_lshrrev_b32 v4, 3, v0"); a("v_mul_lo_u32 v4, s97, v4"); a("v_and_b32 v5, 7, v0"); a("v_lshlrev_b32 v5, 4, v5"); a("v_add_u32 v4, v4, v5")
    a("v_and_b32 v6, 31, v0"); a("v_lshrrev_b32 v7, 5, v0"); a("v_mul_u32_u24 v7, 896, v7"); a("v_lshlrev_b32 v5, 5, v6"); a("v_add_u32 v5, v5, v7")
    a("v_cmp_gt_u32 vcc, 28, v6"); a("v_mov_b32 v7, 0x10000"); a("v_cndmask_b32 v5, v7, v5, vcc")
    a(f"buffer_load_dwordx4 v[20:23], v5, {XS}, 0 offen"); a(f"buffer_load_dwordx4 v[24:27], v5, {XS}, 0 offen offset:16")
    a("s_mul_i32 s75, s74, 224"); a("v_lshlrev_b32 v6, 2, v0"); a("v_cmp_gt_u32 vcc, 56, v0"); a("v_cndmask_b32 v6, v7, v6, vcc")
    a(f"buffer_load_dword v28, v6, {XS}, s75 offen"); a(f"buffer_load_dword v29, v6, {XS}, s75 offen offset:896")
    a("s_lshl_b32 s97, s97, 3")
    for t in range(14):
        a(f"buffer_load_dwordx4 v[{TR+4*t}:{TR+4*t+3}], v4, {TILE}, s96 offen {wflag}")
        if t < 13: a("s_add_u32 s96, s96, s97")
    a("s_load_dwordx2 s[68:69], s[26:27], 0")
    a("s_barrier")
    stamp(9)
    if cen:
        a.c("census in d_debug (zero at launch): byte [kvh*32 + r] = 0x80 | XCD id, written through this XCD's L2 only")
        srd(48, sDBG, 256)
        a("s_getreg_b32 s46, hwreg(HW_REG_XCC_ID)"); a("s_and_b32 s46, s46, 15"); a("s_or_b32 s46, s46, 0x80")
        a("s_lshl_b32 s47, s60, 5")
        a(f"s_cmp_eq_u32 s3, {cenw}"); a("s_cbranch_scc0 L_nocen")
        a("v_mov_b32 v5, s46"); a("v_mov_b32 v7, s61"); a("s_mov_b64 exec, 1")
        a("buffer_store_byte v5, v7, s[48:51], s47 offen")
        a("s_mov_b64 exec, -1")
        a.label("L_nocen")
    srd(36, sWSp, WS_BYTES)
    late_srds()
    lane_consts()
    a("s_waitcnt lgkmcnt(0)")
    make_tags()
    a.c("---- LayerNorm statistics (lanes < 32: batch 0, lanes >= 32: batch 1), rounded like the bf16 reference ----")
    a("s_mov_b32 s74, 0x3f803f80")
    if cen and cen_early:
        a("s_lshl_b32 s47, s60, 5"); a("v_and_b32 v5, 31, v0"); a("buffer_load_ubyte v36, v5, s[48:51], s47 offen sc1")
    a("s_waitcnt vmcnt(17)" if (cen and cen_early) else "s_waitcnt vmcnt(16)")
    if cen and not cen_early:
        a("s_lshl_b32 s47, s60, 5"); a("v_and_b32 v5, 31, v0"); a("buffer_load_ubyte v36, v5, s[48:51], s47 offen sc1")
    a("v_dot2_f32_bf16 v30, v20, s74, 0"); a("v_dot2_f32_bf16 v31, v20, v20, 0")
    for j in range(1, 8):
        a(f"v_dot2c_f32_bf16 v30, s74, v{20+j}"); a(f"v_dot2c_f32_bf16 v31, v{20+j}, v{20+j}")
    for m in ("row_ror:8", "row_ror:4", "row_ror:2", "row_ror:1"):
        a(f"v_add_f32_dpp v30, v30, v30 {m} {DPP}"); a(f"v_add_f32_dpp v31, v31, v31 {m} {DPP}")
    a("v_mov_b32 v32, v30"); a("v_mov_b32 v33, v31")
    a("v_permlane16_swap_b32 v30, v32"); a("v_permlane16_swap_b32 v31, v33")
    a("v_add_f32 v30, v30, v32"); a("v_add_f32 v31, v31, v33")
    a("v_mul_f32 v30, 0x3b124925, v30")
    a("v_mul_f32 v31, 0x3b124925, v31")
    a("v_fma_f32 v31, -v30, v30, v31"); a("v_max_f32 v31, 0, v31")
    a("v_cvt_pk_bf16_f32 v31, v31, v30")
    a("v_and_b32 v30, 0xffff0000, v31")
    a("v_lshlrev_b32 v31, 16, v31")
    a("v_add_f32 v31, 0x3727c5ac, v31"); a("v_cvt_pk_bf16_f32 v31, v31, v31"); a("v_and_b32 v31, 0xffff0000, v31")
    a("v_sqrt_f32 v31, v31"); a("v_cvt_pk_bf16_f32 v31, v31, v31"); a("v_and_b32 v31, 0xffff0000, v31")
    a("v_rcp_f32 v31, v31")
    a("v_readlane_b32 s74, v30, 0"); a("v_readlane_b32 s75, v30, 32"); a("v_readlane_b32 s96, v31, 0"); a("v_readlane_b32 s97, v31, 32")
    a(f"s_waitcnt vmcnt({15 if cen else 14})")
    for b in range(2):
        a(f"v_lshlrev_b32 v{96+2*b}, 16, v{28+b}"); a(f"v_and_b32 v{97+2*b}, 0xffff0000, v{28+b}")
    for b in range(2):
        a(f"v_subrev_f32 v{96+2*b}, s{74+b}, v{96+2*b}"); a(f"v_subrev_f32 v{97+2*b}, s{74+b}, v{97+2*b}")
    for b in range(2): a(f"v_cvt_pk_bf16_f32 v{100+b}, v{96+2*b}, v{97+2*b}")
    for b in range(2):
        a(f"v_lshlrev_b32 v{96+2*b}, 16, v{100+b}"); a(f"v_and_b32 v{97+2*b}, 0xffff0000, v{100+b}")
    for b in range(2):
        a(f"v_mul_f32 v{96+2*b}, s{96+b}, v{96+2*b}"); a(f"v_mul_f32 v{97+2*b}, s{96+b}, v{97+2*b}")
    for j in range(4): a(f"v_cvt_pk_bf16_f32 v{96+j}, v{96+j}, v{96+j}")
    a("s_mul_i32 s74, s3, 896"); a("v_lshlrev_b32 v6, 3, v0"); a("v_add_u32 v6, s74, v6")
    a("v_cmp_gt_u32 vcc, 56, v0"); a("s_and_saveexec_b64 s[96:97], vcc")
    a(f"ds_write_b64 v6, v[96:97] offset:{L_XD}"); a(f"ds_write_b64 v6, v[98:99] offset:{L_XD+448}")
    a("s_mov_b64 exec, s[96:97]")
    a("v_lshrrev_b32 v6, 3, v0"); a("v_lshlrev_b32 v6, 2, v6"); a("v_add_u32 v6, s74, v6")
    a("s_waitcnt lgkmcnt(0)")
    a.c("---- tile GEMV: B = weight rows as loaded, A = selector matrix carrying xn ----")
    XV = 96
    for t in range(7):
        for b in range(2): a(f"ds_read_b32 v{XV+2*t+b}, v6 offset:{L_XD + b*448 + t*32}")
    a("v_lshrrev_b32 v4, 5, v0"); a("v_mul_lo_u32 v4, s99, v4"); a("v_and_b32 v5, 7, v0"); a("v_lshlrev_b32 v5, 5, v5"); a("v_bfe_u32 v7, v0, 4, 1"); a("v_lshlrev_b32 v7, 4, v7")
    a("v_add3_u32 v4, v4, v5, v7")
    a("s_waitcnt lgkmcnt(0)")
    for t in range(7, 14):
        for b in range(2): a(f"ds_read_b32 v{XV+2*t+b}, v6 offset:{L_XD + b*448 + t*32}")
    for t in range(14):
        A0 = 20 + 8 * (t & 1)
        if t == 7: a("s_waitcnt lgkmcnt(0)")
        for b in range(2):
            for r in range(4): a(f"v_and_b32 v{A0+4*b+r}, v{XV+2*t+b}, v{8+r}")
        a(f"s_waitcnt vmcnt({13-t+(1 if cen else 0)})")
        for b in range(2):
            d = 12 + 4 * b
            c = "0" if t == 0 else f"v[{d}:{d+3}]"
            a(f"v_mfma_f32_16x16x32_bf16 v[{d}:{d+3}], v[{A0+4*b}:{A0+4*b+3}], v[{TR+4*t}:{TR+4*t+3}], {c}")
    a("v_mov_b32 v33, 0xfffff000")
    a("v_bfe_u32 v5, v0, 3, 1"); a("v_lshrrev_b32 v7, 5, v0"); a("v_cmp_eq_u32 vcc, v5, v7")
    for k in range(4):
        a(f"v_mov_b32_dpp v{20+k}, v{12+k} row_ror:8 {DPP}"); a(f"v_mov_b32_dpp v{24+k}, v{16+k} row_ror:8 {DPP}")
    for k in range(4): a(f"v_permlane32_swap_b32 v{20+k}, v{24+k}")
    for k in range(4):
        a(f"v_cndmask_b32 v{28+k}, v{16+k}, v{12+k}, {mLO}"); a(f"v_cndmask_b32 v{20+k}, v{20+k}, v{24+k}, {mLO}")
    for k in range(4): a(f"v_add_f32 v{28+k}, v{28+k}, v{20+k}")
    for k in range(4): a(f"v_and_or_b32 v{28+k}, v{28+k}, v33, {T[k]}")
    if cen:
        a("s_mov_b32 s47, 2" if x_fplain else "s_mov_b32 s47, 1")
        a("s_cmp_eq_u32 s3, 0"); a("s_cbranch_scc0 L_cend")
        a("s_mov_b64 s[74:75], vcc")
        a("s_getreg_b32 s46, hwreg(HW_REG_XCC_ID)"); a("s_and_b32 s46, s46, 15"); a("s_or_b32 s46, s46, 0x80")
        a("s_waitcnt vmcnt(0)")
        a("v_cmp_ne_u32 vcc, s46, v36"); a("s_cmp_eq_u64 vcc, 0"); a("s_cselect_b32 s47, 2, 1")
        a("s_mov_b64 vcc, s[74:75]")
        a.label("L_cend")
    a("s_and_saveexec_b64 s[96:97], vcc")
    if cen:
        a("s_cmp_eq_u32 s47, 2"); a("s_cbranch_scc0 L_qp1")
        a(f"buffer_store_dwordx4 v[28:31], v4, {WS}, s98 offen")
        a("s_branch L_qp2")
        a.label("L_qp1")
    a(f"buffer_store_dwordx4 v[28:31], v4, {WS}, s98 offen sc1")
    if cen: a.label("L_qp2")
    a("s_mov_b64 exec, s[96:97]")
    a("s_cmp_eq_u32 s3, 0"); a("s_cbranch_scc1 L_qg")
    stamp(10)
    a("s_setprio 0")
    a("s_branch L_kv")
    a.label("L_qg")
    a.c("---- wave 0: gather the q partials of its (batch, kv head) ----")
    if not cen:
        a("s_getreg_b32 s46, hwreg(HW_REG_XCC_ID)"); a("s_and_b32 s46, s46, 15")
        a("s_lshl_b32 s47, s65, 12"); a("s_or_b32 s47, s47, s64")
        a("s_lshl_b32 s96, s46, 24"); a("s_or_b32 s96, s96, s47")
        a("s_lshl_b32 s97, s60, 7"); a("s_lshl_b32 s75, s61, 2"); a("s_add_u32 s75, s75, s97"); a(f"s_add_u32 s75, s75, {XID}")
        a("v_mov_b32 v5, s96"); a("v_mov_b32 v7, 0"); a("s_mov_b64 s[98:99], exec"); a("s_mov_b64 exec, 1")
        a(f"buffer_store_dword v5, v7, {WS}, s75 offen {'' if x_qplain else 'sc1'}")
        a("s_mov_b64 exec, s[98:99]")
    if adpar:
        a.c("workgroup 0 tells everybody the parity of its XCD (odd XCDs stream slower; the movable FFN work goes to the even ones)")
        a("s_cmp_eq_u32 s2, 0"); a("s_cbranch_scc0 L_nopar")
        a("s_getreg_b32 s96, hwreg(HW_REG_XCC_ID)"); a("s_and_b32 s96, s96, 1")
        if x_par is not None: a(f"s_mov_b32 s96, {x_par}")
        a("s_lshl_b32 s96, s96, 24"); a("s_lshl_b32 s97, s65, 12"); a("s_or_b32 s96, s96, s97"); a("s_or_b32 s96, s96, s64")
        a("v_mov_b32 v5, s96"); a("v_mov_b32 v7, 0"); a("s_mov_b64 s[98:99], exec"); a("s_mov_b64 exec, 1")
        a(f"buffer_store_dword v5, v7, {WS}, 0 offen offset:{PARW} sc1")
        a("s_mov_b64 exec, s[98:99]")
        a.label("L_nopar")
    stamp(10)
    if qlate:
        a("s_setprio 0"); a("s_branch L_kv")
        a.label("L_qg2")
        a("s_setprio 3"); a("s_lshl_b32 s97, s60, 7")
    a("s_lshl_b32 s74, s60, 1"); a("s_add_u32 s74, s74, s62"); a("s_lshl_b32 s74, s74, 13"); a(f"s_add_u32 s74, s74, {QP}"); a("s_add_u32 s75, s74, 4096")
    a("v_lshlrev_b32 v4, 4, v0"); a("s_mov_b32 s98, 0")
    QG = [100 + 4 * i for i in range(7)] + [20]
    if not cen:
        a("v_and_b32 v5, 31, v0"); a("v_lshlrev_b32 v5, 2, v5"); a(f"s_add_u32 s96, s97, {XID}")
    else:
        a("v_and_b32 v5, 31, v0"); a("s_lshl_b32 s96, s60, 5")
    if qdelay and not qlate:
        a.c("back-off: the partials of the 32 producers need about this long to land; a read that races a write stalls the CU's load queue")
        if cen:
            a("s_cmp_eq_u32 s47, 2"); a("s_cbranch_scc0 L_qds")
            if qdelay_f: a(f"s_sleep {qdelay_f}")
            a("s_branch L_qdd")
            a.label("L_qds")
        a(f"s_sleep {qdelay}")
        if cen: a.label("L_qdd")
    a.label("L_qpoll")
    for i in range(8):
        so = "s74" if i < 4 else "s75"
        a(f"buffer_load_dwordx4 v[{QG[i]}:{QG[i]+3}], v4, {WS}, {so} offen offset:{1024*(i&3)} sc1")
    if not cen: a(f"buffer_load_dword v28, v5, {WS}, s96 offen sc1")
    else: a("buffer_load_ubyte v28, v5, s[48:51], s96 offen sc1")
    a("s_add_u32 s98, s98, 1"); a("s_waitcnt vmcnt(0)")
    for i in range(8):
        for k in range(4): a(f"v_xor_b32 v{QG[i]+k}, {T[k]}, v{QG[i]+k}")
    if not cen: a("v_xor_b32 v29, s47, v28"); a("v_and_b32 v29, 0xffffff, v29"); a("v_min_u32 v29, 1, v29")
    or_tree([QG[i] + k for i in range(8) for k in range(4)] + ([] if cen else [29]), "v16")
    a("s_cbranch_vccz L_qgot")
    if retry_sleep: a(f"s_sleep {retry_sleep}")
    a(f"s_cmp_gt_u32 s98, {SPIN_MAX}"); a("s_cbranch_scc0 L_qpoll")
    a.label("L_qgot")
    for h in range(2):
        for k in range(4):
            a(f"v_add_f32 v{QG[h]+k}, v{QG[h]+k}, v{QG[2+h]+k}"); a(f"v_add_f32 v{QG[4+h]+k}, v{QG[4+h]+k}, v{QG[6+h]+k}")
    for h in range(2):
        for k in range(4): a(f"v_add_f32 v{QG[h]+k}, v{QG[h]+k}, v{QG[4+h]+k}")
    for h in range(2):
        a(f"v_cvt_pk_bf16_f32 v{24+2*h}, v{QG[h]}, v{QG[h]+1}"); a(f"v_cvt_pk_bf16_f32 v{25+2*h}, v{QG[h]+2}, v{QG[h]+3}")
    a("v_lshlrev_b32 v4, 3, v0")
    a(f"ds_write_b64 v4, v[24:25] offset:{L_Q}"); a(f"ds_write_b64 v4, v[26:27] offset:{L_Q+512}")
    if not cen: a("v_lshrrev_b32 v28, 24, v28")
    a("v_cmp_ne_u32 vcc, s46, v28"); a("s_cmp_eq_u64 vcc, 0"); a("s_cselect_b32 s96, 2, 1")
    a("s_waitcnt lgkmcnt(0)")
    a("v_mov_b32 v4, 0"); a("v_mov_b32 v5, s96")
    a(f"ds_write_b32 v4, v5 offset:{L_FLAG}")
    stamp(11)
    a("s_setprio 0")
    a("s_branch L_havetags" if qlate else "s_branch L_kv")
    a.label("L_notile")
    a("s_waitcnt lgkmcnt(0)")
    a("s_load_dwordx2 s[68:69], s[26:27], 0")
    a("s_barrier")
    if cen and cenw == 1:
        srd(48, sDBG, 256)
        a("s_getreg_b32 s46, hwreg(HW_REG_XCC_ID)"); a("s_and_b32 s46, s46, 15"); a("s_or_b32 s46, s46, 0x80"); a("s_lshl_b32 s47, s60, 5")
        a("v_mov_b32 v5, s46"); a("v_mov_b32 v7, s61"); a("s_mov_b64 exec, 1")
        a("buffer_store_byte v5, v7, s[48:51], s47 offen")
        a("s_mov_b64 exec, -1")
    srd(36, sWSp, WS_BYTES); srd(52, sX, 1792)
    late_srds()
    lane_consts()
    a("s_waitcnt lgkmcnt(0)")
    make_tags()
    a("s_setprio 0")
    a("s_branch L_kv")

    a.label("L_dpro")
    a.c("---- data waves: prologue ----")
    ids()
    lane_consts()
    for n, size in ((28, 0x10000000), (32, 0x10000000), (36, WS_BYTES), (52, 1792), (56, 1792)):
        a(f"s_mov_b32 s{n+2}, {size:#x}"); a(f"s_mov_b32 s{n+3}, 0x20000")
    a("s_waitcnt lgkmcnt(0)")
    if cen and cenpf:
        a("s_cmp_eq_u32 s3, 13"); a("s_cbranch_scc0 L_nocpf")
        srd(48, sDBG, 256)
        a("v_lshlrev_b32 v4, 2, v0"); a("buffer_load_dword v36, v4, s[48:51], 0 offen")
        a.label("L_nocpf")
    for n, ptr in ((28, sK), (32, sV), (36, sWSp), (52, sX), (56, sOUT)):
        a(f"s_mov_b32 s{n}, s{ptr}"); a(f"s_mov_b32 s{n+1}, s{ptr+1}")
    a("s_load_dwordx2 s[68:69], s[26:27], 0")
    a("s_barrier")
    if codepf:
        a("s_cmp_eq_u32 s3, 15"); a("s_cbranch_scc0 L_nopf")
        a("s_getpc_b64 s[96:97]")
        a.label("L_pc")
        a(f"s_sub_u32 s96, s96, L_pc-{KNAME}"); a("s_subb_u32 s97, s97, 0")
        a("s_lshr_b32 s74, s2, 3"); a("s_mul_i32 s74, s74, 384"); a("v_lshlrev_b32 v4, 6, v0"); a("v_add_u32 v4, s74, v4")
        a("v_cmp_gt_u32 s[74:75], 6, v0"); a(f"v_cmp_gt_u32 vcc, L_codeend-{KNAME}, v4"); a("s_and_b64 vcc, vcc, s[74:75]")
        a("s_and_saveexec_b64 s[74:75], vcc")
        a("s_cbranch_execz L_pfskip")
        a("global_load_dword v36, v4, s[96:97]")
        a.label("L_pfskip")
        a("s_mov_b64 exec, s[74:75]")
        a.label("L_nopf")

    if tlbwarm:
        a("s_cmp_eq_u32 s3, 14"); a("s_cbranch_scc0 L_notlb")
        a("v_cmp_gt_u32 vcc, 28, v0"); a(f"v_mul_u32_u24 v4, {R2}, v0"); a("v_mov_b32 v5, 0"); a("v_cndmask_b32 v4, v5, v4, vcc")
        a(f"s_mov_b32 s74, {P2 + 32768}"); a(f"buffer_load_dword v36, v4, {WS}, s74 offen")
        a(f"s_mov_b32 s74, {YP + 32768}"); a(f"buffer_load_dword v37, v4, {WS}, s74 offen")
        a("v_and_b32 v4, 31, v0"); a(f"v_mul_u32_u24 v4, {R1}, v4"); a("s_lshl_b32 s74, s60, 5"); a(f"s_mul_i32 s74, s74, {R1}"); a(f"s_add_u32 s74, s74, {P1 + 4096}")
        a(f"buffer_load_dword v38, v4, {WS}, s74 offen")
        a.label("L_notlb")

    a.label("L_kv")
    a.c("---- K/V issue: four tokens circulate through the waves so that about 32 KB stay in flight per CU ----")
    if ilv is not None: a("s_add_u32 s14, s44, 16384"); a("s_add_u32 s15, s44, 24576")
    loads = []
    for (base, srdn) in ((KR, K), (VR, V)):
        for t in range(4):
            for h in range(2):
                if ilv is None:
                    so = "s44" if t < 2 else "s45"
                    imm = (t & 1) * 2048 + h * 256
                else:
                    so = ("s44", "s45", "s14", "s15")[t]
                    imm = h * 256
                r = base + (t * 2 + h) * 4
                loads.append(f"buffer_load_dwordx4 v[{r}:{r+3}], v1, {srdn}, {so} offen offset:{imm} {kvflag}")
    a("s_cmp_lt_u32 s3, 12"); a("s_cbranch_scc1 L_nowo0")
    a("s_lshl_b32 s46, s60, 9"); a("s_lshl_b32 s97, s61, 4"); a("s_add_u32 s46, s46, s97"); a("s_mul_i32 s46, s46, 896")
    a("s_sub_u32 s97, s3, 12"); a("s_lshl_b32 s97, s97, 8"); a("s_add_u32 s46, s46, s97")
    a("v_lshrrev_b32 v4, 4, v0"); a("v_mul_u32_u24 v4, 3584, v4"); a("v_and_b32 v5, 15, v0"); a("v_lshlrev_b32 v5, 4, v5"); a("v_add_u32 v2, v4, v5")
    a.label("L_nowo0")
    if not qlate:
        a("s_and_b32 s97, s3, 0xb"); a("s_cmp_eq_u32 s97, 2"); a("s_cbranch_scc1 L_tok"); a("s_cmp_eq_u32 s97, 3"); a("s_cbranch_scc1 L_tok")
    else:
        a("s_lshl_b32 s97, 1, s3"); a("s_and_b32 s97, s97, 0x4d"); a("s_cbranch_scc1 L_tok")
    a("s_lshl_b32 s97, s3, 2"); a("v_mov_b32 v6, s97"); a("s_mov_b32 s98, 0")
    a.label("L_tokw")
    a(f"ds_read_b32 v7, v6 offset:{L_TOK}"); a("s_add_u32 s98, s98, 1"); a("s_waitcnt lgkmcnt(0)")
    a("v_cmp_ne_u32 vcc, 0, v7"); a("s_cbranch_vccnz L_tok")
    a(f"s_cmp_gt_u32 s98, {SPIN_MAX*8}"); a("s_cbranch_scc1 L_tok")
    a(f"s_sleep {toksleep}"); a("s_branch L_tokw")
    a.label("L_tok")
    a("s_cmp_lt_u32 s3, 12"); a("s_cbranch_scc0 L_last")
    if Deven is not None:
        a("s_bitcmp1_b32 s2, 0"); a("s_cbranch_scc1 L_isodd")
        for n, ld in enumerate(loads):
            if n >= Deven: a(f"s_waitcnt vmcnt({Deven-1})")
            a(ld)
        a(f"s_waitcnt vmcnt({RELeven if RELeven is not None else REL})")
        a("s_branch L_rel2")
        a.label("L_isodd")
    for n, ld in enumerate(loads):
        if n >= D: a(f"s_waitcnt vmcnt({D-1})")
        a(ld)
    a("s_branch L_rel")
    a.label("L_last")
    srd(40, sWO, 4096 * 896)
    if Dlast_even is not None:
        a("s_bitcmp1_b32 s2, 0"); a("s_cbranch_scc1 L_lastodd")
        for n, ld in enumerate(loads):
            if Dlast_even and n >= Dlast_even: a(f"s_waitcnt vmcnt({Dlast_even-1})")
            a(ld)
        a("s_branch L_lastwo")
        a.label("L_lastodd")
    for n, ld in enumerate(loads):
        if Dlast and n >= Dlast: a(f"s_waitcnt vmcnt({Dlast-1})")
        a(ld)
    if Dlast_even is not None: a.label("L_lastwo")
    for t in range(4):
        a(f"buffer_load_dwordx4 v[{WOR+4*t}:{WOR+4*t+3}], v2, s[40:43], s46 offen offset:{t*896} {wflag}")
    a("s_branch L_nowo")
    a.label("L_rel")
    a(f"s_waitcnt vmcnt({REL})")
    if Deven is not None: a.label("L_rel2")
    if not dynq:
        nxt = {2:4, 4:0, 0:12, 3:5, 5:1, 1:13, 6:10, 10:8, 8:14, 7:11, 11:9, 9:15}
        tab = sum(v << (4 * k) for k, v in nxt.items())
        a(f"s_mov_b32 s74, {tab & 0xffffffff:#x}"); a(f"s_mov_b32 s75, {tab >> 32:#x}"); a("s_lshl_b32 s97, s3, 2"); a("s_lshr_b64 s[74:75], s[74:75], s97")
        a("s_and_b32 s97, s74, 15"); a("s_lshl_b32 s97, s97, 2"); a("v_mov_b32 v6, s97"); a("v_mov_b32 v7, 1")
        a(f"ds_write_b32 v6, v7 offset:{L_TOK}")
    else:
        if qlate and order[4] == 0: order = (7, 4, 5, 10, 11, 1, 8, 9, 12, 13, 14, 15)
        tab = sum(v << (4 * k) for k, v in enumerate(order))
        a("v_mov_b32 v6, 0"); a("v_mov_b32 v7, 1"); a("s_mov_b64 s[96:97], exec"); a("s_mov_b64 exec, 1")
        a(f"ds_add_rtn_u32 v2, v6, v7 offset:{L_NEXT}")
        a(f"s_mov_b32 s74, {tab & 0xffffffff:#x}"); a(f"s_mov_b32 s75, {tab >> 32:#x}")
        a("s_waitcnt lgkmcnt(0)")
        a("v_readfirstlane_b32 s98, v2")
        a("s_lshl_b32 s98, s98, 2"); a("s_lshr_b64 s[74:75], s[74:75], s98"); a("s_and_b32 s98, s74, 15"); a("s_lshl_b32 s98, s98, 2"); a("v_mov_b32 v6, s98")
        a(f"ds_write_b32 v6, v7 offset:{L_TOK}")
        a("s_mov_b64 exec, s[96:97]")
    a.label("L_nowo")
    if qlate: a("s_cmp_eq_u32 s3, 0"); a("s_cbranch_scc1 L_qg2")
    a("s_cmp_lt_u32 s3, 2"); a("s_cbranch_scc1 L_havetags")
    a("s_waitcnt lgkmcnt(0)")
    make_tags()
    a.label("L_havetags")
    stamp(1)
    a.c("---- wait for q (LDS flag: 1 = device-scope hand-offs, 2 = all workgroups of this kv head on one XCD) ----")
    a("v_mov_b32 v2, 0"); a("s_mov_b32 s97, 0")
    a.label("L_qwait")
    a(f"ds_read_b32 v3, v2 offset:{L_FLAG}"); a("s_add_u32 s97, s97, 1"); a("s_waitcnt lgkmcnt(0)")
    a("v_cmp_ne_u32 vcc, 0, v3"); a("s_cbranch_vccnz L_qok")
    a(f"s_cmp_gt_u32 s97, {SPIN_MAX*8}"); a("s_cbranch_scc1 L_qok")
    a(f"s_sleep {qsleep}"); a("s_branch L_qwait")
    a.label("L_qok")
    a("v_readfirstlane_b32 s100, v3")
    a("v_and_b32 v4, 15, v0"); a("v_lshlrev_b32 v4, 4, v4")
    for h in range(2):
        for hf in range(2):
            r = QF + (h * 2 + hf) * 4
            a(f"ds_read_b128 v[{r}:{r+3}], v4 offset:{L_Q + h*512 + hf*256}")
    stamp(2)
    a("v_lshrrev_b32 v5, 5, v0"); a("v_lshlrev_b32 v5, 10, v5"); a("v_and_b32 v6, 15, v0"); a("v_lshlrev_b32 v6, 5, v6")
    a("v_bfe_u32 v7, v0, 4, 1"); a("v_lshlrev_b32 v7, 4, v7"); a("v_add3_u32 v5, v5, v6, v7")
    a(f"s_mul_i32 s96, s3, {OLS}"); a("v_add_u32 v5, s96, v5")
    a("v_and_b32 v6, 8, v0"); a("s_lshl_b32 s96, s3, 4"); a("v_add_u32 v6, s96, v6")
    a("v_and_b32 v7, 0x37, v0"); a("v_cmp_eq_u32 s[46:47], 0, v7")
    a.c("---- scores: lane = (key group g = l>>4, 8 dims at 8*(l&15)); dot2, then 16-lane reduction; online softmax per wave ----")
    ACC = 116
    a("s_cmp_lt_u32 s3, 12"); a("s_cbranch_scc1 L_kw0"); a("s_waitcnt vmcnt(12) lgkmcnt(0)"); a("s_branch L_kw1")
    a.label("L_kw0"); a("s_waitcnt vmcnt(8) lgkmcnt(0)"); a.label("L_kw1")
    for t in range(4):
        for hf in range(2):
            for r in range(4):
                for h in range(2):
                    kreg = KR + (t * 2 + hf) * 4 + r
                    qreg = QF + (h * 2 + hf) * 4 + r
                    acc = ACC + 2 * t + h
                    if hf == 0 and r == 0: a(f"v_dot2_f32_bf16 v{acc}, v{kreg}, v{qreg}, 0")
                    else: a(f"v_dot2c_f32_bf16 v{acc}, v{kreg}, v{qreg}")
    U, W = 124, KR
    for t in range(4): a(f"v_cndmask_b32 v{U+t}, v{ACC+2*t}, v{ACC+2*t+1}, {mB3}")
    for t in range(4): a(f"v_cndmask_b32 v{W+t}, v{ACC+2*t+1}, v{ACC+2*t}, {mB3}")
    for t in range(4): a(f"v_add_f32_dpp v{U+t}, v{W+t}, v{U+t} row_ror:8 {DPP}")
    for m in ("quad_perm:[1,0,3,2]", "quad_perm:[2,3,0,1]", "row_half_mirror"):
        for t in range(4): a(f"v_add_f32_dpp v{U+t}, v{U+t}, v{U+t} {m} {DPP}")
    for t in range(4): a(f"v_cvt_pk_bf16_f32 v{U+t}, v{U+t}, v{U+t}")
    for t in range(4): a(f"v_and_b32 v{U+t}, 0xffff0000, v{U+t}")
    MX, TMP = 116, 117
    a(f"v_max3_f32 v{MX}, v{U}, v{U+1}, v{U+2}"); a(f"v_max_f32 v{MX}, v{MX}, v{U+3}")
    a(f"v_mov_b32 v{TMP}, v{MX}"); a(f"v_permlane16_swap_b32 v{MX}, v{TMP}"); a(f"v_max_f32 v{MX}, v{MX}, v{TMP}")
    a(f"v_mov_b32 v{TMP}, v{MX}"); a(f"v_permlane32_swap_b32 v{MX}, v{TMP}"); a(f"v_max_f32 v{MX}, v{MX}, v{TMP}")
    a("s_mov_b32 s96, 0x3db8aa3b")
    for t in range(4): a(f"v_sub_f32 v{U+t}, v{U+t}, v{MX}")
    for t in range(4): a(f"v_mul_f32 v{U+t}, s96, v{U+t}")
    for t in range(4): a(f"v_exp_f32 v{U+t}, v{U+t}")
    AO = KR + 4
    for t in range(4): a(f"v_cvt_pk_bf16_f32 v{W+t}, v{U+t}, v{U+t}")
    LS = 117; T2 = 118
    a(f"v_add_f32 v{LS}, v{U}, v{U+1}"); a(f"v_add_f32 v{T2}, v{U+2}, v{U+3}")
    for t in range(4):
        for r in range(4): a(f"v_and_b32 v{AO+4*t+r}, v{W+t}, v{8+r}")
        if t == 0: a(f"v_add_f32 v{LS}, v{LS}, v{T2}")
        if t == 1: a(f"v_mov_b32 v{T2}, v{LS}")
        if t == 2: a(f"v_permlane16_swap_b32 v{LS}, v{T2}"); a(f"v_add_f32 v{LS}, v{LS}, v{T2}")
        if t == 3: a(f"v_mov_b32 v{T2}, v{LS}")
    a(f"v_permlane32_swap_b32 v{LS}, v{T2}"); a(f"v_add_f32 v{LS}, v{LS}, v{T2}")
    a.c("---- P*V: A = selector matrix with the probabilities, B = V rows as loaded ----")
    a("s_mov_b64 s[74:75], exec"); a("s_mov_b64 exec, s[46:47]")
    a(f"ds_write_b64 v6, v[{MX}:{LS}] offset:{L_ST}")
    a("s_mov_b64 exec, s[74:75]")
    for t in range(4):
        a(f"s_waitcnt vmcnt({12 - 2*(t+1)})")
        a("s_cmp_lt_u32 s3, 12"); a(f"s_cbranch_scc0 L_vw{t}")
        a(f"s_waitcnt vmcnt({8 - 2*(t+1)})")
        a.label(f"L_vw{t}")
        for hf in range(2):
            vr = VR + (t * 2 + hf) * 4
            d = 12 + 4 * hf
            c = "0" if t == 0 else f"v[{d}:{d+3}]"
            a(f"v_mfma_f32_16x16x32_bf16 v[{d}:{d+3}], v[{AO+4*t}:{AO+4*t+3}], v[{vr}:{vr+3}], {c}")
    a(f"ds_write_b128 v5, v[12:15] offset:{L_OL}")
    a(f"ds_write_b128 v5, v[16:19] offset:{L_OL + 512}")
    stamp(3)
    if adpar:
        a("s_mov_b32 s99, 0")
        a(f"s_cmp_eq_u32 s3, {fw}"); a("s_cbranch_scc0 L_ffn2_done"); a("s_cmp_lt_u32 s2, 224"); a("s_cbranch_scc0 L_ffn2_done")
        a("s_lshl_b32 s75, s65, 12"); a("s_or_b32 s75, s75, s64"); a("v_mov_b32 v7, 0"); a("s_mov_b32 s98, 0")
        a.label("L_parw")
        a(f"buffer_load_dword v4, v7, {WS}, 0 offen offset:{PARW} sc1")
        a("s_add_u32 s98, s98, 1"); a("s_waitcnt vmcnt(0)")
        a("v_readfirstlane_b32 s74, v4")
        a("s_and_b32 s96, s74, 0xffffff"); a("s_cmp_eq_u32 s96, s75"); a("s_cbranch_scc1 L_parok")
        a(f"s_sleep {max(retry_sleep, 8)}")
        a(f"s_cmp_gt_u32 s98, {SPIN_MAX}"); a("s_cbranch_scc0 L_parw")
        a.label("L_parok")
        a("s_lshr_b32 s74, s74, 24"); a("s_xor_b32 s74, s74, s2"); a("s_and_b32 s74, s74, 1"); a("s_xor_b32 s99, s74, 1")
        a("s_cmp_eq_u32 s99, 1"); a("s_cbranch_scc1 L_ffn2")
    elif not dynffn:
        a(f"s_cmp_eq_u32 s3, {fw}"); a("s_cbranch_scc0 L_ffn2_done"); a("s_cmp_lt_u32 s2, 224"); a("s_cbranch_scc0 L_ffn2_done")
        a("s_and_b32 s74, s2, 1"); a("s_cmp_eq_u32 s74, 0"); a("s_cbranch_scc1 L_ffn2")
    else:
        a(f"s_cmp_eq_u32 s3, {fw}"); a("s_cbranch_scc0 L_ffn2_done")
        a("s_mov_b32 s48, s24"); a("s_mov_b32 s49, s25"); a("s_mov_b32 s50, 256"); a("s_mov_b32 s51, 0x20000")
        a("v_mov_b32 v4, 1"); a("v_mov_b32 v7, 0"); a("s_mov_b64 s[74:75], exec"); a("s_mov_b64 exec, 1")
        a("buffer_atomic_add v4, v7, s[48:51], 0 offen sc0 sc1")
        a("s_waitcnt vmcnt(0)")
        a("v_readfirstlane_b32 s99, v4")
        a("s_mov_b64 exec, s[74:75]")
        a("s_cmp_lt_u32 s99, 112"); a("s_cbranch_scc1 L_ffn2")
    a.label("L_ffn2_done")
    if prewarm:
        a(f"s_cmp_eq_u32 s3, {prewarm}"); a("s_cbranch_scc0 L_nowarm"); a("s_cmp_eq_u32 s100, 2"); a("s_cbranch_scc0 L_nowarm")
        a("s_lshl_b32 s74, s60, 5"); a("s_add_u32 s74, s74, s61"); a(f"s_mul_i32 s74, s74, {R1}"); a(f"s_add_u32 s74, s74, {P1}")
        a("v_lshlrev_b32 v4, 4, v0")
        for i in range(4): a(f"buffer_load_dwordx4 v[{36+4*i}:{39+4*i}], v4, {WS}, s74 offen offset:{1024*i}")
        a.label("L_nowarm")
    a("s_sub_u32 s74, s3, 4"); a("s_cmp_lt_u32 s74, 4"); a("s_cbranch_scc0 L_bar2")
    a("v_and_b32 v4, 31, v0"); a("v_lshlrev_b32 v5, 4, v4"); a("v_lshrrev_b32 v6, 5, v0"); a(f"v_mul_u32_u24 v7, {8*OLS}, v6"); a("v_add_u32 v5, v5, v7")
    a("s_lshr_b32 s75, s74, 1"); a("s_lshl_b32 s96, s75, 10"); a("s_and_b32 s97, s74, 1"); a("s_lshl_b32 s97, s97, 9"); a("s_add_u32 s96, s96, s97"); a("v_add_u32 v5, s96, v5")
    a("v_lshlrev_b32 v7, 3, v6"); a("v_add_u32 v7, v7, v0"); a("v_and_b32 v7, 15, v7"); a("v_lshlrev_b32 v7, 4, v7"); a("s_lshl_b32 s96, s75, 3")
    a("v_lshlrev_b32 v3, 6, v6")
    a("v_add_u32 v6, s96, v7")
    a("v_lshrrev_b32 v7, 2, v4"); a(f"v_mul_u32_u24 v7, {R1}, v7"); a("v_and_b32 v4, 3, v0"); a("v_lshlrev_b32 v4, 4, v4"); a("v_add3_u32 v7, v7, v4, v3")
    a("s_lshl_b32 s75, s60, 5"); a("s_lshl_b32 s96, s74, 3"); a("s_add_u32 s75, s75, s96"); a(f"s_mul_i32 s75, s75, {R1}")
    a("s_lshr_b32 s96, s63, 2"); a("s_lshl_b32 s96, s96, 3"); a("s_lshl_b32 s97, s62, 2"); a("s_add_u32 s96, s96, s97"); a("s_and_b32 s97, s63, 3"); a("s_add_u32 s96, s96, s97")
    a("s_lshl_b32 s96, s96, 7"); a("s_add_u32 s75, s75, s96"); a(f"s_add_u32 s75, s75, {P1}")
    a("v_mov_b32 v33, 0xfffff000"); a("s_mov_b32 s96, 0x3db8aa3b")
    a("s_setprio 3")
    a.label("L_bar2")
    a("s_waitcnt lgkmcnt(0)")
    a("s_barrier")
    if x_endat == 1: a("s_branch L_exit")
    stamp(4)
    a("s_cmp_lt_u32 s74, 4"); a("s_cbranch_scc0 L_notcomb")
    a.c("---- waves 4..7: combine the 16 wave partials, publish one 128-byte line per consumer (P1) ----")
    a(f"ds_read_b64 v[28:29], v6 offset:{L_ST}")
    OR = 36
    for j8 in range(8): a(f"ds_read_b128 v[{OR+4*j8}:{OR+4*j8+3}], v5 offset:{L_OL + j8*OLS}")
    a("s_waitcnt lgkmcnt(8)")
    a("v_mov_b32 v34, v28")
    for m in ("row_ror:8", "row_ror:4", "row_ror:2", "row_ror:1"):
        a(f"v_max_f32_dpp v34, v34, v34 {m} {DPP}")
    a("v_sub_f32 v35, v28, v34"); a("v_mul_f32 v35, s96, v35"); a("v_exp_f32 v35, v35")
    a("v_mul_f32 v29, v35, v29")
    rors = ["row_ror:8", "row_ror:4", "row_ror:2", "row_ror:1"]
    for j8 in range(8):
        a(f"s_waitcnt lgkmcnt({7-j8})")
        for k in range(4):
            op = "v_mul_f32_dpp" if j8 == 0 else "v_fmac_f32_dpp"
            a(f"{op} v{20+k}, v35, v{OR+4*j8+k} row_newbcast:{j8} {DPP}")
        if j8 < 4: a(f"v_add_f32_dpp v29, v29, v29 {rors[j8]} {DPP}")
    for k in range(4): a(f"v_mov_b32 v{24+k}, v{20+k}")
    for k in range(4): a(f"v_permlane32_swap_b32 v{20+k}, v{24+k}")
    for k in range(4): a(f"v_add_f32 v{20+k}, v{20+k}, v{24+k}")
    a(f"v_cndmask_b32 v20, v34, v20, {mLO}"); a(f"v_cndmask_b32 v21, v29, v21, {mLO}"); a(f"v_cndmask_b32 v22, v34, v22, {mLO}"); a(f"v_cndmask_b32 v23, v29, v23, {mLO}")
    for k in range(4): a(f"v_and_or_b32 v{20+k}, v{20+k}, v33, {T[k]}")
    a("s_cmp_eq_u32 s100, 2"); a("s_cbranch_scc1 L_p1fast")
    a(f"buffer_store_dwordx4 v[20:23], v7, {WS}, s75 offen sc1")
    a("s_branch L_p1pub")
    a.label("L_p1fast")
    a(f"buffer_store_dwordx4 v[20:23], v7, {WS}, s75 offen")
    a.label("L_p1pub")
    lds_inc(L_PUBCNT)
    a("s_setprio 0")
    stamp(5)
    a("s_branch L_aux_done")
    a.label("L_notcomb")
    a("s_cmp_lt_u32 s3, 12"); a("s_cbranch_scc1 L_aux")

    a.c("---- waves 12..15: combine the 16 key splits for 16 rows of wo (both batches), project, publish P2 ----")
    if x_endat == 2: a("s_branch L_exit")
    a("s_setprio 3")
    GR = 36
    if ngw == 1:
        a("s_cmp_eq_u32 s3, 12"); a("s_cbranch_scc1 L_s2lead")
        pub_lane_addr("v5", "v6", "v7")
        a("s_sub_u32 s75, s3, 12"); a(f"s_mul_i32 s99, s75, {4*R2}"); a("s_lshl_b32 s97, s60, 5"); a("s_add_u32 s97, s97, s61"); a("s_lshl_b32 s97, s97, 7"); a("s_add_u32 s99, s99, s97"); a(f"s_add_u32 s99, s99, {P2}")
        a("v_bfe_u32 v7, v0, 3, 1"); a("v_lshlrev_b32 v7, 6, v7"); a("v_lshrrev_b32 v16, 4, v0"); a("v_lshlrev_b32 v16, 4, v16"); a("v_add_u32 v7, v7, v16")
        a("v_mov_b32 v33, 0xfffff000")
        a("s_cmp_eq_u32 s3, 15"); a("s_cselect_b32 s97, 8, 16"); a("v_and_b32 v20, 15, v0"); a("v_cmp_gt_u32 s[46:47], s97, v20")
        lds_wait_ge(L_S2FLAG, 1, "L_s2w")
        a("s_waitcnt vmcnt(0)")
        a("s_branch L_s2go")
        a.label("L_s2lead")
    a("s_lshl_b32 s74, s60, 5"); a("s_add_u32 s74, s74, s61"); a(f"s_mul_i32 s74, s74, {R1}"); a(f"s_add_u32 s74, s74, {P1}")
    a("v_lshlrev_b32 v4, 4, v0")
    a("s_mov_b32 s98, 0")
    if p1wait_f is None:
        a("s_cmp_eq_u32 s100, 2"); a("s_cbranch_scc1 L_p1df")
    lds_wait_ge(L_PUBCNT, 4, "L_pubw")
    if p1wait_f is not None:
        if p1wait_f: a(f"s_sleep {p1wait_f}")
        a("s_cmp_eq_u32 s100, 2"); a("s_cbranch_scc1 L_p1df")
    if p1delay:
        a.c("device-scope mode only: back-off until the write-through stores have landed")
        a(f"s_sleep {p1delay}")
    a.label("L_p1df")
    stamp(11)
    def p1ld():
        for i in range(4): a(f"buffer_load_dwordx4 v[{GR+4*i}:{GR+4*i+3}], v4, {WS}, s74 offen offset:{1024*i} sc1")
    p1ld()
    pub_lane_addr("v5", "v6", "v7")
    a("s_sub_u32 s75, s3, 12"); a(f"s_mul_i32 s99, s75, {4*R2}"); a("s_lshl_b32 s97, s60, 5"); a("s_add_u32 s97, s97, s61"); a("s_lshl_b32 s97, s97, 7"); a("s_add_u32 s99, s99, s97"); a(f"s_add_u32 s99, s99, {P2}")
    if ngw == 1:
        a("v_lshrrev_b32 v6, 5, v0"); a("v_lshlrev_b32 v6, 6, v6"); a("v_and_b32 v16, 7, v0"); a("v_lshlrev_b32 v16, 4, v16"); a("v_add_u32 v6, v6, v16")
        a("v_bfe_u32 v16, v0, 4, 1"); a("v_lshlrev_b32 v16, 2, v16"); a("v_add_u32 v6, v6, v16")
        a("v_bfe_u32 v7, v0, 3, 1"); a("v_lshlrev_b32 v7, 6, v7"); a("v_lshrrev_b32 v16, 4, v0"); a("v_lshlrev_b32 v16, 4, v16"); a("v_add_u32 v7, v7, v16")
    else:
        a("v_bfe_u32 v6, v0, 3, 1"); a("v_lshlrev_b32 v6, 7, v6"); a("v_lshrrev_b32 v16, 4, v0"); a("v_lshlrev_b32 v16, 2, v16"); a("v_add_u32 v6, v6, v16"); a("v_add_u32 v7, 64, v6")
    a("v_mov_b32 v33, 0xfffff000"); a("s_mov_b32 s96, 0x3db8aa3b")
    a("s_cmp_eq_u32 s3, 15"); a("s_cselect_b32 s97, 8, 16"); a("v_and_b32 v20, 15, v0"); a("v_cmp_gt_u32 s[46:47], s97, v20")
    a("s_branch L_p1chk")
    a.label("L_p1poll")
    a("s_cmp_eq_u32 s100, 2"); a("s_cbranch_scc1 L_p1rf")
    if p1retry: a(f"s_sleep {p1retry}")
    a.label("L_p1rf")
    p1ld()
    a.label("L_p1chk")
    a("s_add_u32 s98, s98, 1")
    a("s_waitcnt vmcnt(0)")
    untag(GR, 4)
    or_tree(range(GR, GR + 16), "v16")
    a("s_cbranch_vccz L_p1ok")
    if x_nop1: a("s_branch L_p1ok")
    a(f"s_cmp_gt_u32 s98, {SPIN_MAX}"); a("s_cbranch_scc0 L_p1poll")
    a.label("L_p1ok")
    stamp(6)
    if stamps: a("s_mov_b32 s101, s98")
    G = GR
    a(f"v_max3_f32 v16, v{G}, v{G+4}, v{G+8}"); a(f"v_max_f32 v16, v16, v{G+12}")
    a(f"v_max_f32_dpp v16, v16, v16 row_ror:8 {DPP}")
    a("v_mov_b32 v17, v16"); a("v_permlane16_swap_b32 v16, v17"); a("v_max_f32 v16, v16, v17")
    for i in range(4): a(f"v_sub_f32 v{20+i}, v{G+4*i}, v16")
    for i in range(4): a(f"v_mul_f32 v{20+i}, s96, v{20+i}")
    for i in range(4): a(f"v_exp_f32 v{20+i}, v{20+i}")
    a(f"v_mul_f32 v17, v20, v{G+1}")
    for i in range(1, 4): a(f"v_fmac_f32 v17, v{20+i}, v{G+4*i+1}")
    for t in range(4): a(f"v_mul_f32_dpp v{24+t}, v20, v{G+t} row_shl:4 {DPP}")
    a(f"v_add_f32_dpp v17, v17, v17 row_ror:8 {DPP}")
    for i in range(1, 4):
        for t in range(4): a(f"v_fmac_f32_dpp v{24+t}, v{20+i}, v{G+4*i+t} row_shl:4 {DPP}")
        if i == 1: a("v_mov_b32 v18, v17")
        if i == 2: a("v_permlane16_swap_b32 v17, v18"); a("v_add_f32 v17, v17, v18")
        if i == 3: a("v_rcp_f32 v17, v17")
    for t in range(4): a(f"v_add_f32_dpp v{24+t}, v{24+t}, v{24+t} row_ror:8 {DPP}")
    a("v_permlane16_swap_b32 v24, v25"); a("v_permlane16_swap_b32 v26, v27")
    a("v_add_f32 v24, v24, v25"); a("v_add_f32 v26, v26, v27")
    a(f"v_mul_f32_dpp v24, v17, v24 row_shl:4 {DPP}"); a(f"v_mul_f32_dpp v26, v17, v26 row_shl:4 {DPP}")
    a("v_cvt_pk_bf16_f32 v24, v24, v24"); a("v_cvt_pk_bf16_f32 v26, v26, v26")
    if ngw == 1:
        a("v_and_b32 v16, 15, v0"); a("v_cmp_gt_u32 vcc, 4, v16"); a("s_and_saveexec_b64 s[74:75], vcc")
        a(f"ds_write_b32 v6, v24 offset:{L_S2}"); a(f"ds_write_b32 v6, v26 offset:{L_S2+8}")
        a("s_mov_b64 exec, s[74:75]")
        a("s_waitcnt lgkmcnt(0)")
        a("v_mov_b32 v2, 0"); a("v_mov_b32 v3, 1"); a(f"ds_write_b32 v2, v3 offset:{L_S2FLAG}")
        a.label("L_s2go")
        a(f"ds_read_b128 v[20:23], v7 offset:{L_S2}")
        a("s_waitcnt lgkmcnt(0)")
    else:
        a("ds_bpermute_b32 v20, v6, v24"); a("ds_bpermute_b32 v21, v7, v24"); a("ds_bpermute_b32 v22, v6, v26"); a("ds_bpermute_b32 v23, v7, v26")
    AR = 68
    for t in range(4):
        if ngw != 1: a(f"s_waitcnt lgkmcnt({3-t})")
        for r in range(4): a(f"v_and_b32 v{AR+4*t+r}, v{20+t}, v{8+r}")
        c = "0" if t == 0 else "v[12:15]"
        a(f"v_mfma_f32_16x16x32_bf16 v[12:15], v[{AR+4*t}:{AR+4*t+3}], v[{WOR+4*t}:{WOR+4*t+3}], {c}")
    for i in range(4): a(f"v_and_or_b32 v{16+i}, v{12+i}, v33, {T[i]}")
    a("s_mov_b64 s[74:75], exec"); a("s_mov_b64 exec, s[46:47]")
    a(f"buffer_store_dwordx4 v[16:19], v5, {WS}, s99 offen sc1")
    a("s_mov_b64 exec, s[74:75]")
    lds_inc(L_P2CNT)
    a("s_setprio 0")
    stamp(7)
    a("s_branch L_aux_done")

    a.label("L_aux")
    a.c("---- FFN partial publish; final-reduction workgroups gather the FFN rows and form silu(y) ----")
    a(f"s_cmp_eq_u32 s3, {fw}"); a("s_cbranch_scc0 L_ygather")
    if adpar:
        a("s_cmp_eq_u32 s99, 1"); a("s_cbranch_scc0 L_aux_done")
        pub_lane_addr("v4", "v6", "v7")
        a("s_lshr_b32 s74, s2, 1"); a("s_lshl_b32 s74, s74, 7"); a(f"s_add_u32 s74, s74, {YP}")
    elif not dynffn:
        a("s_cmp_lt_u32 s2, 224"); a("s_cbranch_scc0 L_aux_done")
        a("s_and_b32 s74, s2, 1"); a("s_cmp_eq_u32 s74, 0"); a("s_cbranch_scc0 L_aux_done")
        pub_lane_addr("v4", "v6", "v7")
        a("s_lshr_b32 s74, s2, 1"); a("s_lshl_b32 s74, s74, 7"); a(f"s_add_u32 s74, s74, {YP}")
    else:
        a("s_cmp_lt_u32 s99, 112"); a("s_cbranch_scc0 L_aux_done")
        pub_lane_addr("v4", "v6", "v7")
        a("s_lshl_b32 s74, s99, 7"); a(f"s_add_u32 s74, s74, {YP}")
    for c in range(4):
        if c == 3:
            a("v_and_b32 v5, 15, v0"); a("v_cmp_gt_u32 vcc, 8, v5"); a("s_and_saveexec_b64 s[96:97], vcc")
        a(f"buffer_store_dwordx4 v[{100+4*c}:{103+4*c}], v4, {WS}, s74 offen sc1")
        if c == 3: a("s_mov_b64 exec, s[96:97]")
        else: a(f"s_add_u32 s74, s74, {4*R2}")
    a("s_branch L_aux_done")

    a.label("L_ygather")
    if x_endat >= 2: a("s_branch L_exit")
    a("s_cmp_lt_u32 s2, 28"); a("s_cbranch_scc0 L_exit")
    if fw == 1:
        a("s_sub_u32 s75, s3, 1"); a("s_cmp_eq_u32 s3, 0"); a("s_cselect_b32 s75, 0, s75")
    elif fw == 2:
        a("s_cmp_eq_u32 s3, 3"); a("s_cselect_b32 s75, 2, s3")
    else:
        a("s_mov_b32 s75, s3")
    a("s_sub_u32 s74, s3, 5"); a("s_cmp_ge_u32 s3, 8"); a("s_cselect_b32 s75, s74, s75")
    a(f"s_mul_i32 s74, s2, {R2}"); a("s_lshl_b32 s96, s75, 11"); a("s_add_u32 s74, s74, s96"); a(f"s_add_u32 s74, s74, {YP}")
    a("v_lshlrev_b32 v4, 4, v0"); a("s_mov_b32 s98, 0")
    col_addr("v5", "v6"); a("s_lshl_b32 s75, s75, 7"); a("v_add_u32 v5, s75, v5")
    lds_wait_ge(L_PUBCNT, 4, "L_ypw", 2)
    if p1delay:
        a.c("back-off until the write-through stores have landed")
        a(f"s_sleep {p1delay}")
    a.label("L_ypoll")
    for i in range(2): a(f"buffer_load_dwordx4 v[{36+4*i}:{39+4*i}], v4, {WS}, s74 offen offset:{1024*i} sc1")
    a("s_add_u32 s98, s98, 1"); a("s_waitcnt vmcnt(0)")
    untag(36, 2)
    or_tree(range(36, 44), "v16")
    a("s_cbranch_vccz L_yok")
    a(f"s_sleep {max(p1retry, 8)}")
    a(f"s_cmp_gt_u32 s98, {SPIN_MAX}"); a("s_cbranch_scc0 L_ypoll")
    a.label("L_yok")
    for k in range(4): a(f"v_add_f32 v{36+k}, v{36+k}, v{40+k}")
    reduce4(36)
    a("v_and_b32 v6, 8, v0"); a("v_cmp_eq_u32 vcc, 0, v6"); a("s_and_saveexec_b64 s[74:75], vcc")
    a(f"ds_write_b32 v5, v36 offset:{L_YR}")
    a("s_mov_b64 exec, s[74:75]")
    a("s_waitcnt lgkmcnt(0)")
    lds_inc(L_YCNT)
    a("s_cmp_eq_u32 s3, 0"); a("s_cbranch_scc0 L_final")
    a("s_mul_hi_u32 s74, s2, 0x12492493")
    a("s_mul_i32 s75, s74, 14"); a("s_sub_u32 s75, s2, s75")
    a("s_mul_i32 s74, s74, 896"); a("s_lshl_b32 s75, s75, 6"); a("s_add_u32 s99, s74, s75")
    a("v_and_b32 v50, 31, v0"); a("v_lshlrev_b32 v51, 1, v50")
    a(f"buffer_load_ushort v52, v51, {XS}, s99 offen")
    if outwarm: a(f"buffer_load_ushort v56, v51, {OUT}, s99 offen")
    lds_wait_ge(L_YCNT, 7, "L_ywait")
    a("v_lshlrev_b32 v53, 2, v50")
    for k in range(7): a(f"ds_read_b32 v{36+k}, v53 offset:{L_YR + 128*k}")
    a("s_waitcnt lgkmcnt(0)")
    a("v_add_f32 v36, v36, v37"); a("v_add_f32 v38, v38, v39"); a("v_add_f32 v40, v40, v41"); a("v_add_f32 v36, v36, v42")
    a("v_add_f32 v36, v36, v38"); a("v_add_f32 v36, v36, v40")
    a("v_cvt_pk_bf16_f32 v36, v36, v36"); a("v_and_b32 v36, 0xffff0000, v36")
    a("v_mul_f32 v37, 0xbfb8aa3b, v36"); a("v_exp_f32 v37, v37"); a("v_add_f32 v37, 1.0, v37"); a("v_rcp_f32 v37, v37"); a("v_mul_f32 v37, v36, v37")
    a("v_cvt_pk_bf16_f32 v37, v37, v37"); a("v_and_b32 v54, 0xffff0000, v37")
    a("s_waitcnt vmcnt(0)"); a("v_lshlrev_b32 v52, 16, v52")
    a("v_lshrrev_b32 v55, 5, v0"); a("v_lshlrev_b32 v55, 10, v55"); a("v_add_u32 v55, v55, v53")
    a("s_branch L_final")

    a.label("L_aux_done")
    if x_endat >= 2: a("s_branch L_exit")
    a("s_cmp_lt_u32 s2, 28"); a("s_cbranch_scc0 L_exit")
    a.label("L_final")
    a.c("---- final reduction of 32 output columns over the 256 P2 rows, epilogue x + s*g ----")
    a(f"s_mul_i32 s74, s2, {R2}"); a("s_lshl_b32 s75, s3, 11"); a("s_add_u32 s74, s74, s75"); a(f"s_add_u32 s74, s74, {P2}")
    a("v_lshlrev_b32 v4, 4, v0"); a("s_mov_b32 s98, 0")
    col_addr("v5", "v6"); a("s_lshl_b32 s75, s3, 7"); a("v_add_u32 v5, s75, v5")
    a("v_and_b32 v6, 8, v0"); a("v_cmp_eq_u32 s[46:47], 0, v6")
    lds_wait_ge(L_P2CNT, 4, "L_p2w", 1)
    if stamps:
        a("s_cmp_lt_u32 s3, 2"); a("s_cbranch_scc1 L_nost"); a("s_cmp_eq_u32 s3, 12"); a("s_cbranch_scc1 L_nost")
        stamp(11)
        a.label("L_nost")
    a.label("L_fpoll")
    for i in range(2): a(f"buffer_load_dwordx4 v[{36+4*i}:{39+4*i}], v4, {WS}, s74 offen offset:{1024*i} sc1")
    a("s_add_u32 s98, s98, 1"); a("s_waitcnt vmcnt(0)")
    untag(36, 2)
    or_tree(range(36, 44), "v16")
    a("s_cbranch_vccz L_fok")
    if x_nop2: a("s_branch L_fok")
    a(f"s_cmp_gt_u32 s98, {SPIN_MAX}"); a("s_cbranch_scc0 L_fpoll")
    a.label("L_fok")
    stamp(8)
    if stamps:
        a("s_cmp_eq_u32 s3, 12"); a("s_cselect_b32 s101, s101, s98")
    for k in range(4): a(f"v_add_f32 v{36+k}, v{36+k}, v{40+k}")
    reduce4(36)
    a("s_mov_b64 s[74:75], exec"); a("s_mov_b64 exec, s[46:47]")
    a(f"ds_write_b32 v5, v36 offset:{L_SR}")
    a("s_mov_b64 exec, s[74:75]")
    a("s_waitcnt lgkmcnt(0)")
    a("s_barrier")
    a("s_cmp_eq_u32 s3, 0"); a("s_cbranch_scc1 L_epi")
    a("s_cmp_eq_u32 s3, 1"); a("s_cbranch_scc0 L_exit"); a("s_cmp_eq_u32 s2, 0"); a("s_cbranch_scc0 L_exit")
    a("s_mov_b64 exec, 1")
    a("v_mov_b32 v4, s68"); a("v_mov_b32 v5, s69"); a("v_mov_b32 v6, 0")
    a(f"buffer_store_dwordx2 v[4:5], v6, {WS}, 0 offen")
    a("s_branch L_exit")
    a.label("L_epi")
    for k in range(8): a(f"ds_read_b32 v{36+k}, v55 offset:{L_SR + 128*k}")
    a("s_waitcnt lgkmcnt(4)")
    a("v_add_f32 v36, v36, v37"); a("v_add_f32 v38, v38, v39")
    a("s_waitcnt lgkmcnt(0)")
    a("v_add_f32 v40, v40, v41"); a("v_add_f32 v42, v42, v43")
    a("v_add_f32 v36, v36, v38"); a("v_add_f32 v40, v40, v42"); a("v_add_f32 v36, v36, v40")
    a("v_mov_b32 v37, v36"); a("v_permlane32_swap_b32 v36, v37"); a("v_add_f32 v36, v36, v37")
    a("v_cvt_pk_bf16_f32 v36, v36, v36"); a("v_and_b32 v36, 0xffff0000, v36")
    a("v_mul_f32 v36, v36, v54"); a("v_cvt_pk_bf16_f32 v36, v36, v36"); a("v_and_b32 v36, 0xffff0000, v36")
    a("v_add_f32 v36, v52, v36"); a("v_cvt_pk_bf16_f32 v36, v36, v36")
    a(f"s_mov_b64 exec, {mLO}")
    a(f"buffer_store_short v36, v51, {OUT}, s99 offen {outflag}")
    a("s_branch L_exit")

    a.label("L_ffn2")
    a.c("---- second FFN stage: gelu(gate)*up for 16 columns, times 16 rows of w_down ----")
    a("s_waitcnt lgkmcnt(0)")
    srd(48, sWD, 1792 * 896)
    if dynffn: a("s_mov_b32 s75, s99")
    else: a("s_lshr_b32 s75, s2, 1")
    a(f"s_mul_i32 s74, s75, {16*896}")
    a("v_lshrrev_b32 v6, 2, v0"); a("v_mul_u32_u24 v6, 7168, v6"); a("v_and_b32 v5, 3, v0"); a("v_lshlrev_b32 v5, 4, v5"); a("v_add_u32 v6, v6, v5")
    a("s_lshl_b32 s75, s75, 6"); a(f"s_add_u32 s75, s75, {FP}"); a("s_mov_b32 s98, 0")
    G_, U_, X_, HV = 100, 104, 108, 112
    a(f"buffer_load_dwordx4 v[{G_}:{G_+3}], v6, {WS}, s75 offen sc1")
    a("v_lshrrev_b32 v4, 4, v0"); a("v_mul_u32_u24 v4, 3584, v4"); a("v_and_b32 v5, 15, v0"); a("v_lshlrev_b32 v5, 4, v5"); a("v_add_u32 v4, v4, v5")
    WD16 = lambda t, c: 36 + (t * 4 + c) * 4
    for t in range(4):
        for c in range(4):
            r = WD16(t, c)
            a(f"buffer_load_dwordx4 v[{r}:{r+3}], v4, {WD}, s74 offen offset:{t*896 + c*256} {wflag}")
    a("s_waitcnt vmcnt(16)")
    a("s_branch L_fchk")
    a.label("L_fpoll2")
    if retry_sleep: a(f"s_sleep {retry_sleep}")
    a(f"buffer_load_dwordx4 v[{G_}:{G_+3}], v6, {WS}, s75 offen sc1")
    a("s_waitcnt vmcnt(0)")
    a.label("L_fchk")
    a("s_add_u32 s98, s98, 1")
    untag(G_, 1)
    or_tree(range(G_, G_ + 4), "v16")
    a("s_cbranch_vccz L_fgot")
    if x_fplain: a("s_branch L_fgot")
    a(f"s_cmp_gt_u32 s98, {SPIN_MAX}"); a("s_cbranch_scc0 L_fpoll2")
    a.label("L_fgot")
    for k in range(4): a(f"v_add_f32_dpp v{G_+k}, v{G_+k}, v{G_+k} row_ror:8 {DPP}")
    for k in range(4): a(f"v_mov_b32 v{U_+k}, v{G_+k}")
    for k in range(4): a(f"v_permlane16_swap_b32 v{G_+k}, v{U_+k}")
    for k in range(4): a(f"v_add_f32 v{G_+k}, v{G_+k}, v{U_+k}")
    for k in range(4): a(f"v_mov_b32 v{U_+k}, v{G_+k}")
    for k in range(4): a(f"v_permlane32_swap_b32 v{G_+k}, v{U_+k}")
    for k in range(4): a(f"v_cvt_pk_bf16_f32 v{G_+k}, v{G_+k}, v{U_+k}")
    for k in range(4):
        a(f"v_and_b32 v{U_+k}, 0xffff0000, v{G_+k}"); a(f"v_lshlrev_b32 v{G_+k}, 16, v{G_+k}")
    a("s_mov_b32 s96, 0x3d372713"); a("s_mov_b32 s97, 0xc0135761")
    for k in range(4): a(f"v_mul_f32 v{X_+k}, v{G_+k}, v{G_+k}")
    for k in range(4): a(f"v_fma_f32 v{X_+k}, v{X_+k}, s96, 1.0")
    for k in range(4): a(f"v_mul_f32 v{X_+k}, v{X_+k}, v{G_+k}")
    for k in range(4): a(f"v_mul_f32 v{X_+k}, s97, v{X_+k}")
    for k in range(4): a(f"v_exp_f32 v{X_+k}, v{X_+k}")
    for k in range(4): a(f"v_add_f32 v{X_+k}, 1.0, v{X_+k}")
    for k in range(4): a(f"v_rcp_f32 v{X_+k}, v{X_+k}")
    for k in range(4): a(f"v_mul_f32 v{X_+k}, v{X_+k}, v{G_+k}")
    for k in range(4): a(f"v_cvt_pk_bf16_f32 v{X_+k}, v{X_+k}, v{X_+k}")
    for k in range(4): a(f"v_and_b32 v{X_+k}, 0xffff0000, v{X_+k}")
    for k in range(4): a(f"v_mul_f32 v{X_+k}, v{X_+k}, v{U_+k}")
    for k in range(4): a(f"v_cvt_pk_bf16_f32 v{X_+k}, v{X_+k}, v{X_+k}")
    a("v_lshlrev_b32 v5, 4, v0"); a("v_cmp_gt_u32 vcc, 8, v0"); a("s_and_saveexec_b64 s[96:97], vcc")
    a(f"ds_write_b128 v5, v[{X_}:{X_+3}] offset:{L_HD}")
    a("s_mov_b64 exec, s[96:97]")
    a("v_bfe_u32 v5, v0, 3, 1"); a("v_lshlrev_b32 v5, 6, v5"); a("v_lshrrev_b32 v7, 4, v0"); a("v_lshlrev_b32 v7, 4, v7"); a("v_add_u32 v5, v5, v7")
    a("s_waitcnt lgkmcnt(0)")
    a(f"ds_read_b128 v[{HV}:{HV+3}], v5 offset:{L_HD}")
    a("v_mov_b32 v116, 0xfffff000")
    a("s_waitcnt lgkmcnt(0) vmcnt(0)")
    for t in range(4):
        for r in range(4): a(f"v_and_b32 v{20+4*t+r}, v{HV+t}, v{8+r}")
    for half in range(2):
        for cc in range(2):
            c = 2 * half + cc
            for t in range(4):
                r = WD16(t, c)
                src = "0" if t == 0 else f"v[{12+4*cc}:{15+4*cc}]"
                a(f"v_mfma_f32_16x16x32_bf16 v[{12+4*cc}:{15+4*cc}], v[{20+4*t}:{23+4*t}], v[{r}:{r+3}], {src}")
        for cc in range(2):
            c = 2 * half + cc
            for k in range(4): a(f"v_and_or_b32 v{100+4*c+k}, v{12+4*cc+k}, v116, {T[k]}")
    stamp(11)
    a("s_branch L_ffn2_done")

    a.label("L_exit")
    if stamps:
        a("s_memrealtime s[96:97]")
        a("s_waitcnt lgkmcnt(0)")
        a("s_lshl_b32 s74, s2, 4"); a("s_add_u32 s74, s74, s3"); a("s_lshl_b32 s74, s74, 6"); a(f"s_add_u32 s74, s74, {STAMP}")
        a("s_mov_b64 exec, 1")
        a("v_mov_b32 v4, 0")
        for k in range(10): a(f"v_mov_b32 v{20+k}, s{76+2*k}")
        a("v_mov_b32 v30, s96"); a("s_getreg_b32 s75, hwreg(HW_REG_XCC_ID)"); a("v_mov_b32 v31, s75")
        a("v_mov_b32 v32, s101"); a(f"buffer_store_dword v32, v4, {WS}, s74 offen offset:48")
        for q in range(3):
            a(f"buffer_store_dwordx4 v[{20+4*q}:{23+4*q}], v4, {WS}, s74 offen offset:{16*q}")
    a.label("L_end")
    a("s_endpgm")
    a.label("L_codeend")

    head = [
        "; Fused decode step:  out = x + attn(LN(x)) * silu(ffn(LN(x)))   (GQA sliding window of 4096 keys, GEGLU FFN)",
        ";",
        "; One launch, 256 workgroups (one per CU) x 16 waves.  Workgroup id = r*8 + kvh, r = batch*16 + split:",
        ";   it owns 256 keys of kv head kvh of one batch; each wave streams 16 keys of K and V into registers.",
        ";   wave 0: LayerNorm + a 112x64 tile of wq -> q partials -> gathers q for its two heads into LDS",
        ";   wave 1: LayerNorm + a 112x64 tile of w_gate / w_up -> FFN partials;  wave 3 (112 workgroups): GEGLU + 16 rows of w_down",
        ";   all   : scores (dot2), online softmax, P*V (MFMA with a selector operand), partials in LDS",
        ";   waves 4-7 : workgroup combine -> P1;  waves 12-15: split combine + 16 rows of wo -> P2",
        ";   workgroups 0-27: final reduction over the 256 P2 rows and the 112 FFN rows, epilogue.",
        "; Hand-offs between workgroups go through d_ws as 16-byte granules whose low 12 bits per dword carry a",
        "; per-launch tag (derived from a generation word kept in d_ws); readers poll until the tags match.",
        "; When all workgroups of a kv head report the same XCD, the q and P1 hand-offs stay in that XCD's L2,",
        "; otherwise it uses device-scope stores (census of XCD ids: one byte per workgroup in d_debug).",
        "; Kernarg (pointers): 0 A_x, 8 A_k_cache, 16 A_v_cache, 24 A_wq, 32 A_wo, 40 B_x (unused by the reference),",
        ";   48 B_w_gate, 56 B_w_up, 64 B_w_down, 72 d_out (bf16 [2][448]), 80 d_debug, 88 d_ws",
        f"; @launch grid=(256,1,1) block=(1024,1,1) lds={LDS_BYTES}",
        '.amdgcn_target "amdgcn-amd-amdhsa--gfx950"',
        ".text", f".globl {KNAME}", ".p2align 8", f".type {KNAME},@function", f"{KNAME}:"]
    tail = ['.section .rodata,"a"', ".p2align 6", f".amdhsa_kernel {KNAME}",
            "  .amdhsa_next_free_vgpr 128", "  .amdhsa_next_free_sgpr 102", "  .amdhsa_accum_offset 128",
            "  .amdhsa_group_segment_fixed_size 0", "  .amdhsa_kernarg_size 96", "  .amdhsa_user_sgpr_count 2",
            "  .amdhsa_user_sgpr_kernarg_segment_ptr 1", "  .amdhsa_system_sgpr_workgroup_id_x 1", ".end_amdhsa_kernel"]
    return "\n".join(head) + "\n" + a.text() + "\n".join(tail) + "\n"

if __name__ == "__main__":
    print(gen(), end="")
```
